```python
import torch

def _softmax(x, axis=-1):
    return torch.softmax(x, dim=axis)
def _gelu(x):
    return torch.nn.functional.gelu(x, approximate="tanh")
def _silu(x):
    return torch.nn.functional.silu(x)
def _sigmoid(x):
    return torch.sigmoid(x)
def _layernorm(x, axis=-1, eps=1e-5):
    m = x.mean(dim=axis, keepdim=True)
    v = x.var(dim=axis, keepdim=True, unbiased=False)
    return (x - m) / torch.sqrt(v + eps)
def _scatter_add(tgt, idx, src, axis=0):
    return tgt.clone().index_add_(axis, idx, src)
def _segment_sum(src, seg, n):
    out = torch.zeros((n,) + src.shape[1:], dtype=src.dtype)
    return out.index_add_(0, seg, src)
def _pad(x, pw):
    flat = tuple(v for pair in reversed(pw) for v in pair)
    return torch.nn.functional.pad(x, flat)

kernel_name = 'standalone__low_rank_proj_linformer__sampling'

def setup_inputs():

    _w = (lambda a: (lambda t: t.to(torch.bfloat16) if t.is_floating_point() else t)(torch.as_tensor(a)))
    B, H, Sq, Skv, Dh, R = 16, 32, 1, 2048, 128, 64
    return {
        "q": _w((lambda *s: torch.randn(*s, dtype=torch.bfloat16) * 0.8)(B, H, Sq, Dh)),
        "k": _w((lambda *s: torch.randn(*s, dtype=torch.bfloat16) * 0.8)(B, H, Skv, Dh)),
        "v": _w((lambda *s: torch.randn(*s, dtype=torch.bfloat16) * 0.05)(B, H, Skv, Dh)),
        "e_proj": _w((lambda *s: torch.randn(*s, dtype=torch.bfloat16) * 0.8)(R, Skv) * (Skv ** -0.5)),
        "f_proj": _w((lambda *s: torch.randn(*s, dtype=torch.bfloat16) * 0.05)(R, Skv) * (Skv ** -0.5)),
    }

def reference(q, k, v, e_proj, f_proj):
    B, H, Sq, Dh = q.shape
    kp = torch.einsum("rn,bhnd->bhrd", e_proj, k)
    vp = torch.einsum("rn,bhnd->bhrd", f_proj, v)
    scores = torch.einsum("bhqd,bhrd->bhqr", q, kp) * (Dh ** -0.5)
    p = _softmax(scores, axis=-1)
    o = torch.einsum("bhqr,bhrd->bhqd", p, vp)
    return o
```

```python
import re

class Emitter:
    def __init__(self):
        self.items = []
        self.pos = 0
        self.vw = {}
        self.cread = {}
        self.sw = {}
        self.storedata = {}

    def raw(self, text, states=1):
        self.items.append(dict(text=text, kind='raw'))
        self.pos += states

    def comment(self, text):
        self.items.append(dict(text='; ' + text, kind='comment'))

    def nop(self, n):
        while n > 0:
            k = min(n, 16)
            self.items.append(dict(text='s_nop %d' % (k - 1), kind='raw'))
            self.pos += k
            n -= k

    def label(self, name, flush=True):
        if flush:
            self.flush()
        self.items.append(dict(text=name + ':', kind='label', name=name))

    def flush(self):
        need = 0
        for r, (p, t, o) in self.vw.items():
            req = {'valu': 2, 'dot': 3, 'trans': 2, 'mfma': 8}[t]
            need = max(need, req - (self.pos - p - 1))
        for r, p in self.cread.items():
            need = max(need, 3 - (self.pos - p - 1))
        for r, p in self.sw.items():
            need = max(need, 5 - (self.pos - p - 1))
        for r, p in self.storedata.items():
            need = max(need, 2 - (self.pos - p - 1))
        if need > 0:
            self.nop(need)

    def _need(self, r, req):
        return req

    def ins(self, text, kind, rd=(), wr=(), dpp=(), srd=(), swr=(), creads=(), op=None, lanesel=()):
        op = op or text.split()[0]
        need = 0
        def gap(p): return self.pos - p - 1
        allrd = list(rd) + list(dpp) + list(creads)
        for r in allrd:
            if r in self.vw:
                p, t, o = self.vw[r]
                req = 0
                if t in ('valu', 'trans'):
                    if r in dpp: req = 2
                    if kind == 'mfma': req = 2
                    if kind == 'perml': req = 2
                    if kind == 'rdlane': req = max(req, 1)
                    if t == 'trans' and kind != 'trans': req = max(req, 1)
                elif t == 'dot':
                    if kind == 'dot' and o == op and r in creads and r not in rd and r not in dpp: req = 0
                    else: req = 3
                elif t == 'mfma':
                    if kind == 'mfma' and r in creads and r not in rd: req = 0
                    else: req = 8
                need = max(need, req - gap(p))
        for r in wr:
            if r in self.vw:
                p, t, o = self.vw[r]
                req = 0
                if t == 'dot' and not (kind == 'dot' and o == op): req = 3
                if t == 'mfma' and not (kind == 'mfma' and r in creads): req = 8
                need = max(need, req - gap(p))
            if r in self.cread and kind != 'mfma':
                need = max(need, 3 - gap(self.cread[r]))
            if r in self.storedata:
                need = max(need, 2 - gap(self.storedata[r]))
        for s in srd:
            if s in self.sw:
                req = 5 if kind in ('vmem',) else 2
                if s in lanesel: req = 4
                if kind == 'salu': req = 1
                need = max(need, req - gap(self.sw[s]))
        if need > 0:
            self.nop(need)
        self.items.append(dict(text=text, kind=kind))
        here = self.pos
        self.pos += 1
        ptype = {'valu': 'valu', 'dot': 'dot', 'trans': 'trans', 'mfma': 'mfma', 'perml': 'valu', 'rdlane': None,
                 'vmem': None, 'ds': None, 'salu': None}[kind]
        for r in wr:
            if ptype: self.vw[r] = (here, ptype, op)
            else: self.vw.pop(r, None)
        if kind == 'mfma':
            for r in creads: self.cread[r] = here
        for s in swr:
            self.sw[s] = here
        return len(self.items) - 1

    def load(self, text, tag, rd=(), wr=(), srd=(), cond=None):
        idx = self.ins(text, 'vmem', rd=rd, wr=wr, srd=srd)
        self.items[idx].update(vm='load', tag=tag, cond=cond)

    def vmwait(self, tags):
        self.items.append(dict(text=None, kind='vmwait', tags=list(tags), n=63))
        self.pos += 1

    def mark(self, name):
        self.items.append(dict(text=None, kind='mark', name=name))

    def resolve(self, schedule):
        marks = {it['name']: i for i, it in enumerate(self.items) if it['kind'] == 'mark'}
        issued = 0
        last = {}
        for (a, b, env) in schedule:
            for i in range(marks[a], marks[b]):
                it = self.items[i]
                if it.get('vm') == 'load':
                    if it['cond'] is not None and not it['cond'](env):
                        continue
                    last[it['tag']] = issued
                    issued += 1
                elif it['kind'] == 'vmwait':
                    for t in it['tags']:
                        assert t in last, ("wait on never-loaded tag", t)
                        it['n'] = min(it['n'], issued - last[t] - 1)

    def text(self):
        out = []
        for it in self.items:
            k = it['kind']
            if k == 'mark': continue
            if k == 'vmwait':
                out.append('    s_waitcnt vmcnt(%d)' % it['n'])
            elif k == 'label':
                out.append(it['text'])
            else:
                out.append('    ' + it['text'])
        return '\n'.join(out) + '\n'

def vr(a, n=1):
    return 'v%d' % a if n == 1 else 'v[%d:%d]' % (a, a + n - 1)
def sr(a, n=1):
    return 's%d' % a if n == 1 else 's[%d:%d]' % (a, a + n - 1)
def rng(a, n):
    return list(range(a, a + n))
```

```python
import sys
from asmlib import *

KN = "standalone__low_rank_proj_linformer__sampling_kernel"

HEADER = """; Kernarg layout for this problem (64 bytes, ptrs only, base s[0:1]):
; Algorithm (exact re-association of the reference):
; One workgroup (8 waves) per pair of heads; K then V are streamed once with a 32-deep register ring per wave.
"""

def gen(path, rotmode=0, ntflag="nt", stamps=False):
    E = Emitter()
    I = E.ins
    vL, vMain, vE_, vF, vMB = 0, 1, 2, 3, 4
    T5, T6, T7 = 5, 6, 7
    SEL = 8
    Q = 12; O = 12
    P = 20; W = 20; D = 24
    T = 28
    S = 32; PD = 32
    ES = 48; BB = 48
    FS = 64
    RING = 128
    sW = 3
    sQ, sK, sV, sE, sF, sO = 4, 6, 8, 10, 12, 14
    SRM, SRE, SRF, SRQ = 16, 20, 24, 28
    sBase, sRot, sCur, sM0, sM1, sEo, sT, sG = 32, 33, 34, 35, 36, 37, 38, 39
    sPerm, sHi, sC = 40, 41, 42
    sR0, sR1 = 44, 45
    sW64 = 46
    sT2 = 47
    LDS_PART, LDS_PD, LDS_OP = 0, 4096, 8192

    def salu(t, srd=()): I(t, 'salu', srd=srd)
    def valu(t, rd=(), wr=(), srd=(), swr=()): I(t, 'valu', rd=rd, wr=wr, srd=srd, swr=swr)
    def dpp(t, dp, rd=(), wr=()): I(t, 'valu', rd=rd, wr=wr, dpp=dp)

    def slot(x, hh, t): return RING + 4 * (x * 16 + hh * 8 + t)
    def main_load(x, hh, t):
        r = slot(x, hh, t)
        E.load("buffer_load_dwordx4 %s, %s, %s, %s offen offset:%d %s" % (
            vr(r, 4), vr(vMain), sr(SRM, 4), sr(sM1 if hh else sM0), t * 256, ntflag),
            tag=('m', x, hh, t), rd=[vMain], wr=rng(r, 4))
    def main_base(add):
        salu("s_add_u32 %s, %s, %d" % (sr(sM0), sr(sCur), add))
        salu("s_and_b32 %s, %s, 7" % (sr(sM0), sr(sM0)))
        salu("s_lshl_b32 %s, %s, 16" % (sr(sM0), sr(sM0)))
        salu("s_add_u32 %s, %s, %s" % (sr(sM0), sr(sM0), sr(sBase)))
        salu("s_add_u32 %s, %s, 0x80000" % (sr(sM1), sr(sM0)))
    def e_loads(add, cond=None):
        salu("s_add_u32 %s, %s, %d" % (sr(sEo), sr(sCur), add))
        salu("s_and_b32 %s, %s, 7" % (sr(sEo), sr(sEo)))
        salu("s_lshl_b32 %s, %s, 9" % (sr(sEo), sr(sEo)))
        salu("s_add_u32 %s, %s, %s" % (sr(sEo), sr(sEo), sr(sW64)))
        for rt in range(4):
            if rt: salu("s_add_u32 %s, %s, 0x10000" % (sr(sEo), sr(sEo)))
            E.load("buffer_load_dwordx4 %s, %s, %s, %s offen" % (vr(ES + 4 * rt, 4), vr(vE_), sr(SRE, 4), sr(sEo)),
                   tag=('e', rt), rd=[vE_], wr=rng(ES + 4 * rt, 4), cond=cond)
    def f_load(u):
        salu("s_add_u32 %s, %s, %d" % (sr(sT), sr(sW64), u * 4096))
        E.load("buffer_load_dwordx4 %s, %s, %s, %s offen" % (vr(FS + 4 * u, 4), vr(vF), sr(SRF, 4), sr(sT)),
               tag=('f', u), rd=[vF], wr=rng(FS + 4 * u, 4))

    E.mark('P0')
    salu("s_cmp_ge_u32 s2, 256")
    salu("s_cbranch_scc1 L_end")
    salu("s_load_dwordx8 s[4:11], s[0:1], 0")
    salu("s_load_dwordx4 s[12:15], s[0:1], 32")
    valu("v_lshrrev_b32 v5, 6, v0", rd=[0], wr=[5])
    valu("v_and_b32 v0, 63, v0", rd=[0], wr=[0])
    I("v_readfirstlane_b32 s3, v5", 'rdlane', rd=[5], swr=[3])
    valu("v_and_b32 v5, 15, v0", rd=[0], wr=[5])
    valu("v_lshrrev_b32 v6, 4, v0", rd=[0], wr=[6])
    valu("v_lshlrev_b32 v7, 4, v5", rd=[5], wr=[7])
    valu("v_lshl_add_u32 v1, v6, 11, v7", rd=[6, 7], wr=[1])
    salu("s_lshl_b32 %s, s2, 20" % sr(sBase))
    salu("s_lshl_b32 %s, s3, 13" % sr(sT), srd=[3])
    salu("s_add_u32 %s, %s, %s" % (sr(sBase), sr(sBase), sr(sT)))
    salu("s_lshl_b32 %s, s3, 6" % sr(sW64))
    if rotmode == 0:
        salu("s_mov_b32 %s, 0" % sr(sRot))
    elif rotmode == 1:
        salu("s_and_b32 %s, s2, 7" % sr(sRot))
    elif rotmode == 2:
        salu("s_lshr_b32 %s, s2, 3" % sr(sRot))
        salu("s_and_b32 %s, %s, 7" % (sr(sRot), sr(sRot)))
    elif rotmode == 3:
        salu("s_lshl_b32 %s, s2, 1" % sr(sRot))
        salu("s_and_b32 %s, %s, 7" % (sr(sRot), sr(sRot)))
    salu("s_mov_b32 %s, %s" % (sr(sCur), sr(sRot)))
    salu("s_mov_b32 s18, 0x10000000")
    salu("s_mov_b32 s19, 0x00020000")
    salu("s_mov_b32 s30, 0x20000")
    salu("s_mov_b32 s31, 0x00020000")
    salu("s_lshl_b32 %s, s2, 9" % sr(sT2))
    main_base(0)
    E.raw("s_waitcnt lgkmcnt(0)")
    salu("s_mov_b32 s16, s6")
    salu("s_mov_b32 s17, s7")
    salu("s_mov_b32 s28, s4")
    salu("s_mov_b32 s29, s5")
    for hh in range(2):
        E.load("buffer_load_dwordx4 %s, v7, %s, %s offen offset:%d" % (vr(Q + 4 * hh, 4), sr(SRQ, 4), sr(sT2), hh * 256),
               tag=('q', hh), rd=[7], wr=rng(Q + 4 * hh, 4))
    for hh in range(2):
        for t in range(8): main_load(0, hh, t)
    salu("s_mov_b32 s20, s10"); salu("s_mov_b32 s21, s11"); salu("s_mov_b32 s22, 0x40000"); salu("s_mov_b32 s23, 0x00020000")
    salu("s_mov_b32 s24, s12"); salu("s_mov_b32 s25, s13"); salu("s_mov_b32 s26, 0x40000"); salu("s_mov_b32 s27, 0x00020000")
    valu("v_lshlrev_b32 v2, 12, v5", rd=[5], wr=[2])
    valu("v_lshl_add_u32 v2, v6, 4, v2", rd=[6, 2], wr=[2])
    valu("v_lshrrev_b32 v3, 2, v5", rd=[5], wr=[3])
    valu("v_add_u32 v3, %s, v3" % sr(sRot), rd=[3], wr=[3])
    valu("v_and_b32 v3, 7, v3", rd=[3], wr=[3])
    valu("v_lshlrev_b32 v3, 9, v3", rd=[3], wr=[3])
    valu("v_lshl_add_u32 v3, v6, 16, v3", rd=[6, 3], wr=[3])
    valu("v_and_b32 v4, 3, v5", rd=[5], wr=[4])
    valu("v_lshl_add_u32 v3, v4, 4, v3", rd=[4, 3], wr=[3])
    for u in range(4): f_load(u)
    main_base(1)
    for hh in range(2):
        for t in range(8): main_load(1, hh, t)
    e_loads(0)
    for u in range(4, 16): f_load(u)
    valu("v_xor_b32 v3, 0x800, v3", rd=[3], wr=[3])
    salu("s_mov_b32 %s, 0x07060302" % sr(sPerm))
    salu("s_mov_b32 %s, 0xffff0000" % sr(sHi))
    import struct, math
    c = (128 ** -0.5) * math.log2(math.e)
    salu("s_mov_b32 %s, 0x%08x" % (sr(sC), struct.unpack('<I', struct.pack('<f', c))[0]))
    valu("v_and_b32 v4, 1, v5", rd=[5], wr=[4])
    valu("v_mul_u32_u24 v28, 16, v4", rd=[4], wr=[28])
    valu("v_sub_u32 v4, 0, v4", rd=[4], wr=[4])
    valu("v_and_b32 v4, 0xffff0000, v4", rd=[4], wr=[4])
    valu("v_lshrrev_b32 v29, 3, v5", rd=[5], wr=[29])
    valu("v_mul_u32_u24 v29, 0x0202, v29", rd=[29], wr=[29])
    valu("v_sub_u32 v29, 0x0302, v29", rd=[29], wr=[29])
    valu("v_lshlrev_b32 v29, v28, v29", rd=[28, 29], wr=[29])
    valu("v_mov_b32 v30, 0x0c0c0000", wr=[30])
    valu("v_lshrrev_b32 v30, v28, v30", rd=[28, 30], wr=[30])
    valu("v_or_b32 v29, v29, v30", rd=[29, 30], wr=[29])
    valu("v_bfe_u32 v30, v5, 1, 2", rd=[5], wr=[30])
    valu("v_mov_b32 v31, 0x0c0c0c0c", wr=[31])
    for k in range(4):
        valu("v_cmp_eq_u32 vcc, %d, v30" % k, rd=[30], swr=['vcc'])
        valu("v_cndmask_b32 %s, v31, v29, vcc" % vr(SEL + k), rd=[31, 29], wr=[SEL + k], srd=['vcc'])
    for r in range(16):
        valu("v_mov_b32 %s, 0" % vr(S + r), wr=[S + r])
    salu("s_mov_b32 %s, 0" % sr(sG))
    E.vmwait([('q', 0), ('q', 1)])
    E.mark('K0')
    E.label("L_kloop")
    salu("s_cmp_eq_u32 %s, 3" % sr(sG))
    salu("s_cselect_b32 s16, s8, s6")
    salu("s_cselect_b32 s17, s9, s7")
    for x in range(2):
        main_base(x + 2)
        pend = []
        def red(t, lvl):
            p = P + t
            if lvl == 0:
                dpp("v_add_f32_dpp %s, %s, %s row_ror:8 row_mask:0xf bank_mask:0x3" % (vr(p), vr(p), vr(p)), [p], rd=[p], wr=[p])
            elif lvl == 1:
                tt = T + (t & 1)
                dpp("v_add_f32_dpp %s, %s, %s row_ror:8 row_mask:0xf bank_mask:0xc" % (vr(p), vr(tt), vr(tt)), [tt], rd=[tt, p], wr=[p])
            elif lvl == 2:
                dpp("v_add_f32_dpp %s, %s, %s row_half_mirror row_mask:0xf bank_mask:0xf" % (vr(p), vr(p), vr(p)), [p], rd=[p], wr=[p])
            elif lvl == 3:
                dpp("v_add_f32_dpp %s, %s, %s quad_perm:[1,0,3,2] row_mask:0xf bank_mask:0xf" % (vr(p), vr(p), vr(p)), [p], rd=[p], wr=[p])
            elif lvl == 4:
                dpp("v_add_f32_dpp %s, %s, %s quad_perm:[2,3,0,1] row_mask:0xf bank_mask:0xf" % (vr(p), vr(p), vr(p)), [p], rd=[p], wr=[p])
            elif lvl == 5:
                valu("v_and_b32 %s, %s, %s" % (vr(30 + (t & 1)), vr(p), vr(vMB)), rd=[p, vMB], wr=[30 + (t & 1)])
                valu("v_sub_f32 %s, %s, %s" % (vr(p), vr(p), vr(30 + (t & 1))), rd=[p, 30 + (t & 1)], wr=[p])
        for hh in range(2):
            for t in range(8):
                r = slot(x, hh, t)
                dst = (P + t) if hh == 0 else (T + (t & 1))
                E.vmwait([('m', x, hh, t)])
                for k in range(4):
                    c_ = "0" if k == 0 else vr(dst)
                    I("v_dot2_f32_bf16 %s, %s, %s, %s" % (vr(dst), vr(r + k), vr(Q + 4 * hh + k), c_), 'dot',
                      rd=[r + k, Q + 4 * hh + k], wr=[dst], creads=([dst] if k else []))
                main_load(x, hh, t)
                if hh == 0:
                    if t >= 1: red(t - 1, 0)
                else:
                    if t == 0: red(7, 0)
                    for lvl in range(1, 6):
                        tt = t - lvl
                        if tt >= 0: red(tt, lvl)
        for step in range(1, 6):
            for lvl in range(step, 6):
                tt = 7 + step - lvl
                if 0 <= tt <= 7 and lvl >= step: red(tt, lvl)
        for k in range(4):
            valu("v_perm_b32 %s, %s, %s, %s" % (vr(P + k), vr(P + 2 * k + 1), vr(P + 2 * k), sr(sPerm)),
                 rd=[P + 2 * k, P + 2 * k + 1], wr=[P + k])
        E.vmwait([('e', rt) for rt in range(4)])
        for rt in range(4):
            I("v_mfma_f32_16x16x32_bf16 %s, %s, %s, %s" % (vr(S + 4 * rt, 4), vr(ES + 4 * rt, 4), vr(P, 4), vr(S + 4 * rt, 4)), 'mfma',
              rd=rng(ES + 4 * rt, 4) + rng(P, 4), wr=rng(S + 4 * rt, 4), creads=rng(S + 4 * rt, 4))
        if x == 1:
            salu("s_cmp_eq_u32 %s, 3" % sr(sG))
            salu("s_cbranch_scc1 L_kdone")
            e_loads(x + 1, cond=lambda env: env['it'] != 3)
        else:
            e_loads(x + 1)
    salu("s_add_u32 %s, %s, 2" % (sr(sCur), sr(sCur)))
    salu("s_add_u32 %s, %s, 1" % (sr(sG), sr(sG)))
    E.flush()
    salu("s_branch L_kloop")
    E.mark('K1')
    E.label("L_kdone")
    E.nop(8)
    salu("s_add_u32 %s, %s, 2" % (sr(sCur), sr(sCur)))
    for r in range(16):
        dpp("v_add_f32_dpp %s, %s, %s quad_perm:[1,0,3,2] row_mask:0xf bank_mask:0xf" % (vr(S + r), vr(S + r), vr(S + r)),
            [S + r], rd=[S + r], wr=[S + r])
    valu("v_bfe_u32 v5, v0, 3, 1", rd=[0], wr=[5])
    valu("v_lshrrev_b32 v6, 4, v0", rd=[0], wr=[6])
    valu("v_lshlrev_b32 v7, 8, v5", rd=[5], wr=[7])
    valu("v_lshl_add_u32 v7, v6, 4, v7", rd=[6, 7], wr=[7])
    salu("s_lshl_b32 %s, s3, 9" % sr(sT))
    valu("v_add_u32 v7, %s, v7" % sr(sT), rd=[7], wr=[7])
    salu("s_mov_b32 exec_lo, 0x01010101")
    salu("s_mov_b32 exec_hi, 0x01010101")
    for rt in range(4):
        I("ds_write_b128 v7, %s offset:%d" % (vr(S + 4 * rt, 4), LDS_PART + rt * 64), 'ds', rd=[7] + rng(S + 4 * rt, 4))
    salu("s_mov_b64 exec, -1")
    valu("v_lshlrev_b32 v7, 2, v0", rd=[0], wr=[7])
    for r in range(8):
        valu("v_mov_b32 %s, 0" % vr(O + r), wr=[O + r])
    E.raw("s_waitcnt lgkmcnt(0)")
    E.raw("s_barrier")
    for w in range(8):
        I("ds_read2st64_b32 %s, v7 offset0:%d offset1:%d" % (vr(S + 2 * w, 2), 2 * w, 2 * w + 1), 'ds', rd=[7], wr=rng(S + 2 * w, 2))
    salu("s_lshl_b32 %s, s3, 8" % sr(sT))
    valu("v_add_u32 v7, %s, v7" % sr(sT), rd=[7], wr=[7])
    valu("v_lshlrev_b32 v6, 6, v6", rd=[6], wr=[6])
    valu("v_add_u32 v6, %s, v6" % sr(sT), rd=[6], wr=[6])
    E.raw("s_waitcnt lgkmcnt(0)")
    step = 1
    while step < 8:
        for w in range(0, 8, 2 * step):
            a, b = S + 2 * w, S + 2 * (w + step)
            valu("v_pk_add_f32 %s, %s, %s" % (vr(a, 2), vr(a, 2), vr(b, 2)), rd=rng(a, 2) + rng(b, 2), wr=rng(a, 2))
        step *= 2
    X0, X1, M0, M1 = S, S + 1, S + 2, S + 3
    def wave_reduce(op, src0, src1, d0, d1):
        ctl = ["quad_perm:[1,0,3,2] row_mask:0xf bank_mask:0xf", "quad_perm:[2,3,0,1] row_mask:0xf bank_mask:0xf",
               "row_half_mirror row_mask:0xf bank_mask:0xf", "row_mirror row_mask:0xf bank_mask:0xf",
               "row_bcast:15 row_mask:0xa bank_mask:0xf", "row_bcast:31 row_mask:0xc bank_mask:0xf"]
        for n, c_ in enumerate(ctl):
            for (s_, d_) in ((src0, d0), (src1, d1)):
                s = s_ if n == 0 else d_
                dpp("%s_dpp %s, %s, %s %s" % (op, vr(d_), vr(s), vr(s), c_), [s], rd=[s, d_], wr=[d_])
        I("v_readlane_b32 %s, %s, 63" % (sr(sR0), vr(d0)), 'rdlane', rd=[d0], swr=[sR0])
        I("v_readlane_b32 %s, %s, 63" % (sr(sR1), vr(d1)), 'rdlane', rd=[d1], swr=[sR1])
    wave_reduce("v_max_f32", X0, X1, M0, M1)
    valu("v_subrev_f32 %s, %s, %s" % (vr(X0), sr(sR0), vr(X0)), rd=[X0], wr=[X0], srd=[sR0])
    valu("v_subrev_f32 %s, %s, %s" % (vr(X1), sr(sR1), vr(X1)), rd=[X1], wr=[X1], srd=[sR1])
    valu("v_mul_f32 %s, %s, %s" % (vr(X0), sr(sC), vr(X0)), rd=[X0], wr=[X0])
    valu("v_mul_f32 %s, %s, %s" % (vr(X1), sr(sC), vr(X1)), rd=[X1], wr=[X1])
    I("v_exp_f32 %s, %s" % (vr(X0), vr(X0)), 'trans', rd=[X0], wr=[X0])
    I("v_exp_f32 %s, %s" % (vr(X1), vr(X1)), 'trans', rd=[X1], wr=[X1])
    wave_reduce("v_add_f32", X0, X1, M0, M1)
    I("v_rcp_f32 %s, %s" % (vr(M0), sr(sR0)), 'trans', wr=[M0], srd=[sR0])
    I("v_rcp_f32 %s, %s" % (vr(M1), sr(sR1)), 'trans', wr=[M1], srd=[sR1])
    valu("v_mul_f32 %s, %s, %s" % (vr(X0), vr(X0), vr(M0)), rd=[X0, M0], wr=[X0])
    valu("v_mul_f32 %s, %s, %s" % (vr(X1), vr(X1), vr(M1)), rd=[X1, M1], wr=[X1])
    valu("v_cvt_pk_bf16_f32 %s, %s, %s" % (vr(M0), vr(X1), vr(X0)), rd=[X0, X1], wr=[M0])
    I("ds_write_b32 v7, %s offset:%d" % (vr(M0), LDS_PD), 'ds', rd=[7, M0])
    salu("s_mov_b32 %s, 0" % sr(sG))
    E.raw("s_waitcnt lgkmcnt(0)")
    E.mark('V0')
    E.label("L_vloop")
    for k in range(4):
        I("ds_read_b128 %s, v6 offset:%d" % (vr(PD + 4 * k, 4), LDS_PD + 16 * k), 'ds', rd=[6], wr=rng(PD + 4 * k, 4))
    salu("s_cmp_eq_u32 %s, 0" % sr(sG))
    salu("s_cselect_b32 s26, 0x40000, 0")
    E.raw("s_waitcnt lgkmcnt(0)")
    def build_b(src, buf):
        for k in range(4):
            valu("v_perm_b32 %s, %s, %s, %s" % (vr(buf + k), vr(src), vr(src), vr(SEL + k)), rd=[src, SEL + k], wr=[buf + k])
    build_b(PD, BB)
    for u in range(16):
        if u < 15: build_b(PD + u + 1, BB + 4 * ((u + 1) & 3))
        E.vmwait([('f', u)])
        b = BB + 4 * (u & 3)
        c_ = "0" if u == 0 else vr(D, 4)
        I("v_mfma_f32_16x16x32_bf16 %s, %s, %s, %s" % (vr(D, 4), vr(FS + 4 * u, 4), vr(b, 4), c_), 'mfma',
          rd=rng(FS + 4 * u, 4) + rng(b, 4), wr=rng(D, 4), creads=(rng(D, 4) if u else []))
        f_load(u)
    main_base(2)
    I("v_permlane32_swap_b32 %s, %s" % (vr(D), vr(D + 2)), 'perml', rd=[D, D + 2], wr=[D, D + 2])
    I("v_permlane32_swap_b32 %s, %s" % (vr(D + 1), vr(D + 3)), 'perml', rd=[D + 1, D + 3], wr=[D + 1, D + 3])
    I("v_permlane16_swap_b32 %s, %s" % (vr(D), vr(D + 1)), 'perml', rd=[D, D + 1], wr=[D, D + 1])
    I("v_permlane16_swap_b32 %s, %s" % (vr(D + 2), vr(D + 3)), 'perml', rd=[D + 2, D + 3], wr=[D + 2, D + 3])
    for a in range(4):
        valu("v_and_b32 %s, %s, %s" % (vr(W + a), sr(sHi), vr(D + a)), rd=[D + a], wr=[W + a])
        valu("v_sub_f32 %s, %s, %s" % (vr(W + a), vr(D + a), vr(W + a)), rd=[D + a, W + a], wr=[W + a])
        valu("v_perm_b32 %s, %s, %s, %s" % (vr(W + a), vr(D + a), vr(W + a), sr(sPerm)), rd=[D + a, W + a], wr=[W + a])
    seq = [(a, hh, t) for a in range(4) for hh in range(2) for t in range(8)]
    def prep(n):
        a, hh, t = seq[n]
        xr = T + (n & 1)
        dpp("v_mov_b32_dpp %s, %s row_newbcast:%d row_mask:0xf bank_mask:0xf" % (vr(xr), vr(W + a), t + 8 * hh), [W + a], wr=[xr])
        build_b(xr, BB + 4 * (n & 3))
    prep(0)
    for n, (a, hh, t) in enumerate(seq):
        if hh == 0 and t == 0 and a > 0:
            if a == 2:
                salu("s_cmp_eq_u32 %s, 0" % sr(sG))
                salu("s_cselect_b32 s18, 0x10000000, 0")
            main_base(2 + a)
        if n + 1 < len(seq): prep(n + 1)
        x = a & 1
        r = slot(x, hh, t)
        b = BB + 4 * (n & 3)
        E.vmwait([('m', x, hh, t)])
        I("v_mfma_f32_16x16x32_bf16 %s, %s, %s, %s" % (vr(O + 4 * hh, 4), vr(r, 4), vr(b, 4), vr(O + 4 * hh, 4)), 'mfma',
          rd=rng(r, 4) + rng(b, 4), wr=rng(O + 4 * hh, 4), creads=rng(O + 4 * hh, 4))
        main_load(x, hh, t)
    salu("s_add_u32 %s, %s, 4" % (sr(sCur), sr(sCur)))
    salu("s_add_u32 %s, %s, 1" % (sr(sG), sr(sG)))
    salu("s_cmp_lt_u32 %s, 2" % sr(sG))
    E.flush()
    salu("s_cbranch_scc1 L_vloop")
    E.mark('V1')
    R = 20
    for t in range(4):
        dpp("v_add_f32_dpp %s, %s, %s row_ror:8 row_mask:0xf bank_mask:0x3" % (vr(R + t), vr(O + t), vr(O + t)), [O + t], rd=[O + t, R + t], wr=[R + t])
        dpp("v_add_f32_dpp %s, %s, %s row_ror:8 row_mask:0xf bank_mask:0xc" % (vr(R + t), vr(O + 4 + t), vr(O + 4 + t)), [O + 4 + t], rd=[O + 4 + t, R + t], wr=[R + t])
    valu("v_and_b32 v6, 7, v0", rd=[0], wr=[6])
    valu("v_lshlrev_b32 v6, 2, v6", rd=[6], wr=[6])
    valu("v_lshl_add_u32 v6, v5, 9, v6", rd=[5, 6], wr=[6])
    valu("v_lshrrev_b32 v7, 4, v0", rd=[0], wr=[7])
    valu("v_lshl_add_u32 v6, v7, 7, v6", rd=[7, 6], wr=[6])
    salu("s_lshl_b32 %s, s3, 10" % sr(sT))
    valu("v_add_u32 v6, %s, v6" % sr(sT), rd=[6], wr=[6])
    for t in range(4):
        I("ds_write_b32 v6, %s offset:%d" % (vr(R + t), LDS_OP + 32 * t), 'ds', rd=[6, R + t])
    valu("v_lshlrev_b32 v6, 4, v0", rd=[0], wr=[6])
    valu("v_lshlrev_b32 v7, 3, v0", rd=[0], wr=[7])
    salu("s_mov_b32 s28, s14")
    salu("s_mov_b32 s29, s15")
    E.raw("s_waitcnt lgkmcnt(0)")
    E.raw("s_barrier")
    salu("s_cmp_lg_u32 s3, 0")
    salu("s_cbranch_scc1 L_end")
    for w in range(8):
        I("ds_read_b128 %s, v6 offset:%d" % (vr(32 + 4 * w, 4), LDS_OP + 1024 * w), 'ds', rd=[6], wr=rng(32 + 4 * w, 4))
    E.raw("s_waitcnt lgkmcnt(0)")
    step = 1
    while step < 8:
        for w in range(0, 8, 2 * step):
            for hf in range(2):
                a, b = 32 + 4 * w + 2 * hf, 32 + 4 * (w + step) + 2 * hf
                valu("v_pk_add_f32 %s, %s, %s" % (vr(a, 2), vr(a, 2), vr(b, 2)), rd=rng(a, 2) + rng(b, 2), wr=rng(a, 2))
        step *= 2
    valu("v_cvt_pk_bf16_f32 v20, v32, v33", rd=[32, 33], wr=[20])
    valu("v_cvt_pk_bf16_f32 v21, v34, v35", rd=[34, 35], wr=[21])
    I("buffer_store_dwordx2 v[20:21], v7, %s, %s offen" % (sr(SRQ, 4), sr(sT2)), 'vmem', rd=[20, 21, 7])
    E.label("L_end", flush=False)
    E.raw("s_endpgm")
    E.mark('END')
    sched = [('P0', 'K0', {})] + [('K0', 'K1', {'it': it}) for it in range(4)] + [('K1', 'V0', {})] + \
            [('V0', 'V1', {'g': g}) for g in range(2)] + [('V1', 'END', {})]
    E.resolve(sched)
    out = HEADER
    out += "; @launch grid=(256,1,1) block=(512,1,1) lds=16384\n"
    out += '.amdgcn_target "amdgcn-amd-amdhsa--gfx950"\n.text\n.globl %s\n.p2align 8\n.type %s,@function\n%s:\n' % (KN, KN, KN)
    out += E.text()
    out += """.section .rodata,"a"
.p2align 6
.amdhsa_kernel %s
  .amdhsa_next_free_vgpr 256
  .amdhsa_next_free_sgpr 64
  .amdhsa_accum_offset 256
  .amdhsa_group_segment_fixed_size 0
  .amdhsa_kernarg_size 64
  .amdhsa_user_sgpr_count 2
  .amdhsa_user_sgpr_kernarg_segment_ptr 1
  .amdhsa_system_sgpr_workgroup_id_x 1
.end_amdhsa_kernel
""" % KN
    open(path, "w").write(out)

if __name__ == "__main__":
    gen(sys.argv[1] if len(sys.argv) > 1 else "standalone__low_rank_proj_linformer__sampling.s")
```

```python
import sys
from asmlib import *

KN = "standalone__low_rank_proj_linformer__sampling_kernel"

HEADER = """; Kernarg layout for this problem (64 bytes, ptrs only, base s[0:1]):
; Algorithm (exact re-association of the reference):
; One workgroup (8 waves) per pair of heads; K then V are streamed once with a 32-deep register ring per wave.
"""

def gen(path, rotmode=0, ntflag="nt", stamps=False):
    E = Emitter()
    I = E.ins
    vL, vMain, vE_, vF, vMB = 0, 1, 2, 3, 4
    T5, T6, T7 = 5, 6, 7
    SEL = 8
    Q = 12; O = 12
    P = 20; W = 20; D = 24
    T = 28
    S = 32; PD = 32
    ES = 48; BB = 48
    FS = 64
    RING = 128
    sW = 3
    sQ, sK, sV, sE, sF, sO = 4, 6, 8, 10, 12, 14
    SRM, SRE, SRF, SRQ = 16, 20, 24, 28
    sBase, sRot, sCur, sM0, sM1, sEo, sT, sG = 32, 33, 34, 35, 36, 37, 38, 39
    sPerm, sHi, sC = 40, 41, 42
    sR0, sR1 = 44, 45
    sW64 = 46
    sT2 = 47
    LDS_PART, LDS_PD, LDS_OP = 0, 4096, 8192

    def salu(t, srd=()): I(t, 'salu', srd=srd)
    def valu(t, rd=(), wr=(), srd=(), swr=()): I(t, 'valu', rd=rd, wr=wr, srd=srd, swr=swr)
    def dpp(t, dp, rd=(), wr=()): I(t, 'valu', rd=rd, wr=wr, dpp=dp)

    def slot(x, hh, t): return RING + 4 * (x * 16 + hh * 8 + t)
    def main_load(x, hh, t):
        r = slot(x, hh, t)
        E.load("buffer_load_dwordx4 %s, %s, %s, %s offen offset:%d %s" % (
            vr(r, 4), vr(vMain), sr(SRM, 4), sr(sM1 if hh else sM0), t * 256, ntflag),
            tag=('m', x, hh, t), rd=[vMain], wr=rng(r, 4))
    def main_base(add):
        salu("s_add_u32 %s, %s, %d" % (sr(sM0), sr(sCur), add))
        salu("s_and_b32 %s, %s, 7" % (sr(sM0), sr(sM0)))
        salu("s_lshl_b32 %s, %s, 16" % (sr(sM0), sr(sM0)))
        salu("s_add_u32 %s, %s, %s" % (sr(sM0), sr(sM0), sr(sBase)))
        salu("s_add_u32 %s, %s, 0x80000" % (sr(sM1), sr(sM0)))
    def e_loads(add, cond=None):
        salu("s_add_u32 %s, %s, %d" % (sr(sEo), sr(sCur), add))
        salu("s_and_b32 %s, %s, 7" % (sr(sEo), sr(sEo)))
        salu("s_lshl_b32 %s, %s, 9" % (sr(sEo), sr(sEo)))
        salu("s_add_u32 %s, %s, %s" % (sr(sEo), sr(sEo), sr(sW64)))
        for rt in range(4):
            if rt: salu("s_add_u32 %s, %s, 0x10000" % (sr(sEo), sr(sEo)))
            E.load("buffer_load_dwordx4 %s, %s, %s, %s offen" % (vr(ES + 4 * rt, 4), vr(vE_), sr(SRE, 4), sr(sEo)),
                   tag=('e', rt), rd=[vE_], wr=rng(ES + 4 * rt, 4), cond=cond)
    def f_load(u):
        salu("s_add_u32 %s, %s, %d" % (sr(sT), sr(sW64), u * 4096))
        E.load("buffer_load_dwordx4 %s, %s, %s, %s offen" % (vr(FS + 4 * u, 4), vr(vF), sr(SRF, 4), sr(sT)),
               tag=('f', u), rd=[vF], wr=rng(FS + 4 * u, 4))

    def stamp(n):
        if stamps:
            E.raw("s_memrealtime s[%d:%d]" % (50 + 2 * n, 51 + 2 * n))
    E.mark('P0')
    salu("s_cmp_ge_u32 s2, 256")
    salu("s_cbranch_scc1 L_end")
    stamp(0)
    salu("s_load_dwordx8 s[4:11], s[0:1], 0")
    salu("s_load_dwordx4 s[12:15], s[0:1], 32")
    valu("v_lshrrev_b32 v5, 6, v0", rd=[0], wr=[5])
    valu("v_and_b32 v0, 63, v0", rd=[0], wr=[0])
    I("v_readfirstlane_b32 s3, v5", 'rdlane', rd=[5], swr=[3])
    valu("v_and_b32 v5, 15, v0", rd=[0], wr=[5])
    valu("v_lshrrev_b32 v6, 4, v0", rd=[0], wr=[6])
    valu("v_lshlrev_b32 v7, 4, v5", rd=[5], wr=[7])
    valu("v_lshl_add_u32 v1, v6, 11, v7", rd=[6, 7], wr=[1])
    salu("s_lshl_b32 %s, s2, 20" % sr(sBase))
    salu("s_lshl_b32 %s, s3, 13" % sr(sT), srd=[3])
    salu("s_add_u32 %s, %s, %s" % (sr(sBase), sr(sBase), sr(sT)))
    salu("s_lshl_b32 %s, s3, 6" % sr(sW64))
    if rotmode == 0:
        salu("s_mov_b32 %s, 0" % sr(sRot))
    elif rotmode == 1:
        salu("s_and_b32 %s, s2, 7" % sr(sRot))
    elif rotmode == 2:
        salu("s_lshr_b32 %s, s2, 3" % sr(sRot))
        salu("s_and_b32 %s, %s, 7" % (sr(sRot), sr(sRot)))
    elif rotmode == 3:
        salu("s_lshl_b32 %s, s2, 1" % sr(sRot))
        salu("s_and_b32 %s, %s, 7" % (sr(sRot), sr(sRot)))
    salu("s_mov_b32 %s, %s" % (sr(sCur), sr(sRot)))
    salu("s_mov_b32 s18, 0x10000000")
    salu("s_mov_b32 s19, 0x00020000")
    salu("s_mov_b32 s30, 0x20000")
    salu("s_mov_b32 s31, 0x00020000")
    salu("s_lshl_b32 %s, s2, 9" % sr(sT2))
    main_base(0)
    E.raw("s_waitcnt lgkmcnt(0)")
    salu("s_mov_b32 s16, s6")
    salu("s_mov_b32 s17, s7")
    salu("s_mov_b32 s28, s4")
    salu("s_mov_b32 s29, s5")
    for hh in range(2):
        E.load("buffer_load_dwordx4 %s, v7, %s, %s offen offset:%d" % (vr(Q + 4 * hh, 4), sr(SRQ, 4), sr(sT2), hh * 256),
               tag=('q', hh), rd=[7], wr=rng(Q + 4 * hh, 4))
    for hh in range(2):
        for t in range(8): main_load(0, hh, t)
    salu("s_mov_b32 s20, s10"); salu("s_mov_b32 s21, s11"); salu("s_mov_b32 s22, 0x40000"); salu("s_mov_b32 s23, 0x00020000")
    salu("s_mov_b32 s24, s12"); salu("s_mov_b32 s25, s13"); salu("s_mov_b32 s26, 0x40000"); salu("s_mov_b32 s27, 0x00020000")
    valu("v_lshlrev_b32 v2, 12, v5", rd=[5], wr=[2])
    valu("v_lshl_add_u32 v2, v6, 4, v2", rd=[6, 2], wr=[2])
    valu("v_lshrrev_b32 v3, 2, v5", rd=[5], wr=[3])
    valu("v_add_u32 v3, %s, v3" % sr(sRot), rd=[3], wr=[3])
    valu("v_and_b32 v3, 7, v3", rd=[3], wr=[3])
    valu("v_lshlrev_b32 v3, 9, v3", rd=[3], wr=[3])
    valu("v_lshl_add_u32 v3, v6, 16, v3", rd=[6, 3], wr=[3])
    valu("v_and_b32 v4, 3, v5", rd=[5], wr=[4])
    valu("v_lshl_add_u32 v3, v4, 4, v3", rd=[4, 3], wr=[3])
    for u in range(4): f_load(u)
    main_base(1)
    for hh in range(2):
        for t in range(8): main_load(1, hh, t)
    e_loads(0)
    for u in range(4, 16): f_load(u)
    valu("v_xor_b32 v3, 0x800, v3", rd=[3], wr=[3])
    salu("s_mov_b32 %s, 0x07060302" % sr(sPerm))
    salu("s_mov_b32 %s, 0xffff0000" % sr(sHi))
    import struct, math
    c = (128 ** -0.5) * math.log2(math.e)
    salu("s_mov_b32 %s, 0x%08x" % (sr(sC), struct.unpack('<I', struct.pack('<f', c))[0]))
    valu("v_and_b32 v4, 1, v5", rd=[5], wr=[4])
    valu("v_mul_u32_u24 v28, 16, v4", rd=[4], wr=[28])
    valu("v_sub_u32 v4, 0, v4", rd=[4], wr=[4])
    valu("v_and_b32 v4, 0xffff0000, v4", rd=[4], wr=[4])
    valu("v_lshrrev_b32 v29, 3, v5", rd=[5], wr=[29])
    valu("v_mul_u32_u24 v29, 0x0202, v29", rd=[29], wr=[29])
    valu("v_sub_u32 v29, 0x0302, v29", rd=[29], wr=[29])
    valu("v_lshlrev_b32 v29, v28, v29", rd=[28, 29], wr=[29])
    valu("v_mov_b32 v30, 0x0c0c0000", wr=[30])
    valu("v_lshrrev_b32 v30, v28, v30", rd=[28, 30], wr=[30])
    valu("v_or_b32 v29, v29, v30", rd=[29, 30], wr=[29])
    valu("v_bfe_u32 v30, v5, 1, 2", rd=[5], wr=[30])
    valu("v_mov_b32 v31, 0x0c0c0c0c", wr=[31])
    for k in range(4):
        valu("v_cmp_eq_u32 vcc, %d, v30" % k, rd=[30], swr=['vcc'])
        valu("v_cndmask_b32 %s, v31, v29, vcc" % vr(SEL + k), rd=[31, 29], wr=[SEL + k], srd=['vcc'])
    for r in range(16):
        valu("v_mov_b32 %s, 0" % vr(S + r), wr=[S + r])
    salu("s_mov_b32 %s, 0" % sr(sG))
    E.vmwait([('q', 0), ('q', 1)])
    stamp(1)
    E.mark('K0')
    E.label("L_kloop")
    salu("s_cmp_eq_u32 %s, 3" % sr(sG))
    salu("s_cselect_b32 s16, s8, s6")
    salu("s_cselect_b32 s17, s9, s7")
    for x in range(2):
        main_base(x + 2)
        pend = []
        def red(t, lvl):
            p = P + t
            if lvl == 0:
                dpp("v_add_f32_dpp %s, %s, %s row_ror:8 row_mask:0xf bank_mask:0x3" % (vr(p), vr(p), vr(p)), [p], rd=[p], wr=[p])
            elif lvl == 1:
                tt = T + (t & 1)
                dpp("v_add_f32_dpp %s, %s, %s row_ror:8 row_mask:0xf bank_mask:0xc" % (vr(p), vr(tt), vr(tt)), [tt], rd=[tt, p], wr=[p])
            elif lvl == 2:
                dpp("v_add_f32_dpp %s, %s, %s row_half_mirror row_mask:0xf bank_mask:0xf" % (vr(p), vr(p), vr(p)), [p], rd=[p], wr=[p])
            elif lvl == 3:
                dpp("v_add_f32_dpp %s, %s, %s quad_perm:[1,0,3,2] row_mask:0xf bank_mask:0xf" % (vr(p), vr(p), vr(p)), [p], rd=[p], wr=[p])
            elif lvl == 4:
                dpp("v_add_f32_dpp %s, %s, %s quad_perm:[2,3,0,1] row_mask:0xf bank_mask:0xf" % (vr(p), vr(p), vr(p)), [p], rd=[p], wr=[p])
            elif lvl == 5:
                valu("v_and_b32 %s, %s, %s" % (vr(30 + (t & 1)), vr(p), vr(vMB)), rd=[p, vMB], wr=[30 + (t & 1)])
                valu("v_sub_f32 %s, %s, %s" % (vr(p), vr(p), vr(30 + (t & 1))), rd=[p, 30 + (t & 1)], wr=[p])
        for hh in range(2):
            for t in range(8):
                r = slot(x, hh, t)
                dst = (P + t) if hh == 0 else (T + (t & 1))
                E.vmwait([('m', x, hh, t)])
                for k in range(4):
                    c_ = "0" if k == 0 else vr(dst)
                    I("v_dot2_f32_bf16 %s, %s, %s, %s" % (vr(dst), vr(r + k), vr(Q + 4 * hh + k), c_), 'dot',
                      rd=[r + k, Q + 4 * hh + k], wr=[dst], creads=([dst] if k else []))
                main_load(x, hh, t)
                if hh == 0:
                    if t >= 1: red(t - 1, 0)
                else:
                    if t == 0: red(7, 0)
                    for lvl in range(1, 6):
                        tt = t - lvl
                        if tt >= 0: red(tt, lvl)
        for step in range(1, 6):
            for lvl in range(step, 6):
                tt = 7 + step - lvl
                if 0 <= tt <= 7 and lvl >= step: red(tt, lvl)
        for k in range(4):
            valu("v_perm_b32 %s, %s, %s, %s" % (vr(P + k), vr(P + 2 * k + 1), vr(P + 2 * k), sr(sPerm)),
                 rd=[P + 2 * k, P + 2 * k + 1], wr=[P + k])
        E.vmwait([('e', rt) for rt in range(4)])
        for rt in range(4):
            I("v_mfma_f32_16x16x32_bf16 %s, %s, %s, %s" % (vr(S + 4 * rt, 4), vr(ES + 4 * rt, 4), vr(P, 4), vr(S + 4 * rt, 4)), 'mfma',
              rd=rng(ES + 4 * rt, 4) + rng(P, 4), wr=rng(S + 4 * rt, 4), creads=rng(S + 4 * rt, 4))
        if x == 1:
            salu("s_cmp_eq_u32 %s, 3" % sr(sG))
            salu("s_cbranch_scc1 L_kdone")
            e_loads(x + 1, cond=lambda env: env['it'] != 3)
        else:
            e_loads(x + 1)
    salu("s_add_u32 %s, %s, 2" % (sr(sCur), sr(sCur)))
    salu("s_add_u32 %s, %s, 1" % (sr(sG), sr(sG)))
    E.flush()
    salu("s_branch L_kloop")
    E.mark('K1')
    E.label("L_kdone")
    E.nop(8)
    stamp(2)
    salu("s_add_u32 %s, %s, 2" % (sr(sCur), sr(sCur)))
    for r in range(16):
        dpp("v_add_f32_dpp %s, %s, %s quad_perm:[1,0,3,2] row_mask:0xf bank_mask:0xf" % (vr(S + r), vr(S + r), vr(S + r)),
            [S + r], rd=[S + r], wr=[S + r])
    valu("v_bfe_u32 v5, v0, 3, 1", rd=[0], wr=[5])
    valu("v_lshrrev_b32 v6, 4, v0", rd=[0], wr=[6])
    valu("v_lshlrev_b32 v7, 8, v5", rd=[5], wr=[7])
    valu("v_lshl_add_u32 v7, v6, 4, v7", rd=[6, 7], wr=[7])
    salu("s_lshl_b32 %s, s3, 9" % sr(sT))
    valu("v_add_u32 v7, %s, v7" % sr(sT), rd=[7], wr=[7])
    salu("s_mov_b32 exec_lo, 0x01010101")
    salu("s_mov_b32 exec_hi, 0x01010101")
    for rt in range(4):
        I("ds_write_b128 v7, %s offset:%d" % (vr(S + 4 * rt, 4), LDS_PART + rt * 64), 'ds', rd=[7] + rng(S + 4 * rt, 4))
    salu("s_mov_b64 exec, -1")
    valu("v_lshlrev_b32 v7, 2, v0", rd=[0], wr=[7])
    for r in range(8):
        valu("v_mov_b32 %s, 0" % vr(O + r), wr=[O + r])
    E.raw("s_waitcnt lgkmcnt(0)")
    E.raw("s_barrier")
    for w in range(8):
        I("ds_read2st64_b32 %s, v7 offset0:%d offset1:%d" % (vr(S + 2 * w, 2), 2 * w, 2 * w + 1), 'ds', rd=[7], wr=rng(S + 2 * w, 2))
    salu("s_lshl_b32 %s, s3, 8" % sr(sT))
    valu("v_add_u32 v7, %s, v7" % sr(sT), rd=[7], wr=[7])
    valu("v_lshlrev_b32 v6, 6, v6", rd=[6], wr=[6])
    valu("v_add_u32 v6, %s, v6" % sr(sT), rd=[6], wr=[6])
    E.raw("s_waitcnt lgkmcnt(0)")
    step = 1
    while step < 8:
        for w in range(0, 8, 2 * step):
            a, b = S + 2 * w, S + 2 * (w + step)
            valu("v_pk_add_f32 %s, %s, %s" % (vr(a, 2), vr(a, 2), vr(b, 2)), rd=rng(a, 2) + rng(b, 2), wr=rng(a, 2))
        step *= 2
    X0, X1, M0, M1 = S, S + 1, S + 2, S + 3
    def wave_reduce(op, src0, src1, d0, d1):
        ctl = ["quad_perm:[1,0,3,2] row_mask:0xf bank_mask:0xf", "quad_perm:[2,3,0,1] row_mask:0xf bank_mask:0xf",
               "row_half_mirror row_mask:0xf bank_mask:0xf", "row_mirror row_mask:0xf bank_mask:0xf",
               "row_bcast:15 row_mask:0xa bank_mask:0xf", "row_bcast:31 row_mask:0xc bank_mask:0xf"]
        for n, c_ in enumerate(ctl):
            for (s_, d_) in ((src0, d0), (src1, d1)):
                s = s_ if n == 0 else d_
                dpp("%s_dpp %s, %s, %s %s" % (op, vr(d_), vr(s), vr(s), c_), [s], rd=[s, d_], wr=[d_])
        I("v_readlane_b32 %s, %s, 63" % (sr(sR0), vr(d0)), 'rdlane', rd=[d0], swr=[sR0])
        I("v_readlane_b32 %s, %s, 63" % (sr(sR1), vr(d1)), 'rdlane', rd=[d1], swr=[sR1])
    wave_reduce("v_max_f32", X0, X1, M0, M1)
    valu("v_subrev_f32 %s, %s, %s" % (vr(X0), sr(sR0), vr(X0)), rd=[X0], wr=[X0], srd=[sR0])
    valu("v_subrev_f32 %s, %s, %s" % (vr(X1), sr(sR1), vr(X1)), rd=[X1], wr=[X1], srd=[sR1])
    valu("v_mul_f32 %s, %s, %s" % (vr(X0), sr(sC), vr(X0)), rd=[X0], wr=[X0])
    valu("v_mul_f32 %s, %s, %s" % (vr(X1), sr(sC), vr(X1)), rd=[X1], wr=[X1])
    I("v_exp_f32 %s, %s" % (vr(X0), vr(X0)), 'trans', rd=[X0], wr=[X0])
    I("v_exp_f32 %s, %s" % (vr(X1), vr(X1)), 'trans', rd=[X1], wr=[X1])
    wave_reduce("v_add_f32", X0, X1, M0, M1)
    I("v_rcp_f32 %s, %s" % (vr(M0), sr(sR0)), 'trans', wr=[M0], srd=[sR0])
    I("v_rcp_f32 %s, %s" % (vr(M1), sr(sR1)), 'trans', wr=[M1], srd=[sR1])
    valu("v_mul_f32 %s, %s, %s" % (vr(X0), vr(X0), vr(M0)), rd=[X0, M0], wr=[X0])
    valu("v_mul_f32 %s, %s, %s" % (vr(X1), vr(X1), vr(M1)), rd=[X1, M1], wr=[X1])
    valu("v_cvt_pk_bf16_f32 %s, %s, %s" % (vr(M0), vr(X1), vr(X0)), rd=[X0, X1], wr=[M0])
    I("ds_write_b32 v7, %s offset:%d" % (vr(M0), LDS_PD), 'ds', rd=[7, M0])
    salu("s_mov_b32 %s, 0" % sr(sG))
    E.raw("s_waitcnt lgkmcnt(0)")
    stamp(3)
    E.mark('V0')
    E.label("L_vloop")
    for k in range(4):
        I("ds_read_b128 %s, v6 offset:%d" % (vr(PD + 4 * k, 4), LDS_PD + 16 * k), 'ds', rd=[6], wr=rng(PD + 4 * k, 4))
    salu("s_cmp_eq_u32 %s, 0" % sr(sG))
    salu("s_cselect_b32 s26, 0x40000, 0")
    E.raw("s_waitcnt lgkmcnt(0)")
    def build_b(src, buf):
        for k in range(4):
            valu("v_perm_b32 %s, %s, %s, %s" % (vr(buf + k), vr(src), vr(src), vr(SEL + k)), rd=[src, SEL + k], wr=[buf + k])
    build_b(PD, BB)
    for u in range(16):
        if u < 15: build_b(PD + u + 1, BB + 4 * ((u + 1) & 3))
        E.vmwait([('f', u)])
        b = BB + 4 * (u & 3)
        c_ = "0" if u == 0 else vr(D, 4)
        I("v_mfma_f32_16x16x32_bf16 %s, %s, %s, %s" % (vr(D, 4), vr(FS + 4 * u, 4), vr(b, 4), c_), 'mfma',
          rd=rng(FS + 4 * u, 4) + rng(b, 4), wr=rng(D, 4), creads=(rng(D, 4) if u else []))
        f_load(u)
    main_base(2)
    I("v_permlane32_swap_b32 %s, %s" % (vr(D), vr(D + 2)), 'perml', rd=[D, D + 2], wr=[D, D + 2])
    I("v_permlane32_swap_b32 %s, %s" % (vr(D + 1), vr(D + 3)), 'perml', rd=[D + 1, D + 3], wr=[D + 1, D + 3])
    I("v_permlane16_swap_b32 %s, %s" % (vr(D), vr(D + 1)), 'perml', rd=[D, D + 1], wr=[D, D + 1])
    I("v_permlane16_swap_b32 %s, %s" % (vr(D + 2), vr(D + 3)), 'perml', rd=[D + 2, D + 3], wr=[D + 2, D + 3])
    for a in range(4):
        valu("v_and_b32 %s, %s, %s" % (vr(W + a), sr(sHi), vr(D + a)), rd=[D + a], wr=[W + a])
        valu("v_sub_f32 %s, %s, %s" % (vr(W + a), vr(D + a), vr(W + a)), rd=[D + a, W + a], wr=[W + a])
        valu("v_perm_b32 %s, %s, %s, %s" % (vr(W + a), vr(D + a), vr(W + a), sr(sPerm)), rd=[D + a, W + a], wr=[W + a])
    seq = [(a, hh, t) for a in range(4) for hh in range(2) for t in range(8)]
    def prep(n):
        a, hh, t = seq[n]
        xr = T + (n & 1)
        dpp("v_mov_b32_dpp %s, %s row_newbcast:%d row_mask:0xf bank_mask:0xf" % (vr(xr), vr(W + a), t + 8 * hh), [W + a], wr=[xr])
        build_b(xr, BB + 4 * (n & 3))
    prep(0)
    for n, (a, hh, t) in enumerate(seq):
        if hh == 0 and t == 0 and a > 0:
            if a == 2:
                salu("s_cmp_eq_u32 %s, 0" % sr(sG))
                salu("s_cselect_b32 s18, 0x10000000, 0")
            main_base(2 + a)
        if n + 1 < len(seq): prep(n + 1)
        x = a & 1
        r = slot(x, hh, t)
        b = BB + 4 * (n & 3)
        E.vmwait([('m', x, hh, t)])
        I("v_mfma_f32_16x16x32_bf16 %s, %s, %s, %s" % (vr(O + 4 * hh, 4), vr(r, 4), vr(b, 4), vr(O + 4 * hh, 4)), 'mfma',
          rd=rng(r, 4) + rng(b, 4), wr=rng(O + 4 * hh, 4), creads=rng(O + 4 * hh, 4))
        main_load(x, hh, t)
    salu("s_add_u32 %s, %s, 4" % (sr(sCur), sr(sCur)))
    salu("s_add_u32 %s, %s, 1" % (sr(sG), sr(sG)))
    salu("s_cmp_lt_u32 %s, 2" % sr(sG))
    E.flush()
    salu("s_cbranch_scc1 L_vloop")
    E.mark('V1')
    stamp(4)
    R = 20
    for t in range(4):
        dpp("v_add_f32_dpp %s, %s, %s row_ror:8 row_mask:0xf bank_mask:0x3" % (vr(R + t), vr(O + t), vr(O + t)), [O + t], rd=[O + t, R + t], wr=[R + t])
        dpp("v_add_f32_dpp %s, %s, %s row_ror:8 row_mask:0xf bank_mask:0xc" % (vr(R + t), vr(O + 4 + t), vr(O + 4 + t)), [O + 4 + t], rd=[O + 4 + t, R + t], wr=[R + t])
    valu("v_and_b32 v6, 7, v0", rd=[0], wr=[6])
    valu("v_lshlrev_b32 v6, 2, v6", rd=[6], wr=[6])
    valu("v_lshl_add_u32 v6, v5, 9, v6", rd=[5, 6], wr=[6])
    valu("v_lshrrev_b32 v7, 4, v0", rd=[0], wr=[7])
    valu("v_lshl_add_u32 v6, v7, 7, v6", rd=[7, 6], wr=[6])
    salu("s_lshl_b32 %s, s3, 10" % sr(sT))
    valu("v_add_u32 v6, %s, v6" % sr(sT), rd=[6], wr=[6])
    for t in range(4):
        I("ds_write_b32 v6, %s offset:%d" % (vr(R + t), LDS_OP + 32 * t), 'ds', rd=[6, R + t])
    valu("v_lshlrev_b32 v6, 4, v0", rd=[0], wr=[6])
    valu("v_lshlrev_b32 v7, 3, v0", rd=[0], wr=[7])
    salu("s_mov_b32 s28, s14")
    salu("s_mov_b32 s29, s15")
    E.raw("s_waitcnt lgkmcnt(0)")
    E.raw("s_barrier")
    if stamps:
        stamp(5)
        salu("s_load_dwordx2 s[64:65], s[0:1], 56")
        salu("s_getreg_b32 s62, hwreg(HW_REG_XCC_ID)")
        salu("s_getreg_b32 s63, hwreg(HW_REG_HW_ID)")
        E.raw("s_waitcnt lgkmcnt(0)")
        salu("s_mov_b32 s66, 0x100000")
        salu("s_mov_b32 s67, 0x00020000")
        for n in range(6):
            valu("v_mov_b32 v%d, s%d" % (40 + n, 50 + 2 * n), wr=[40 + n])
        valu("v_mov_b32 v46, s62", wr=[46])
        valu("v_mov_b32 v47, s63", wr=[47])
        salu("s_lshl_b32 s62, s2, 8")
        salu("s_lshl_b32 s63, s3, 5")
        salu("s_add_u32 s62, s62, s63")
        valu("v_mov_b32 v39, 0", wr=[39])
        I("buffer_store_dwordx4 v[40:43], v39, s[64:67], s62 offen", 'vmem', rd=[39])
        I("buffer_store_dwordx4 v[44:47], v39, s[64:67], s62 offen offset:16", 'vmem', rd=[39])
        E.raw("s_waitcnt vmcnt(0)")
    salu("s_cmp_lg_u32 s3, 0")
    salu("s_cbranch_scc1 L_end")
    for w in range(8):
        I("ds_read_b128 %s, v6 offset:%d" % (vr(32 + 4 * w, 4), LDS_OP + 1024 * w), 'ds', rd=[6], wr=rng(32 + 4 * w, 4))
    E.raw("s_waitcnt lgkmcnt(0)")
    step = 1
    while step < 8:
        for w in range(0, 8, 2 * step):
            for hf in range(2):
                a, b = 32 + 4 * w + 2 * hf, 32 + 4 * (w + step) + 2 * hf
                valu("v_pk_add_f32 %s, %s, %s" % (vr(a, 2), vr(a, 2), vr(b, 2)), rd=rng(a, 2) + rng(b, 2), wr=rng(a, 2))
        step *= 2
    valu("v_cvt_pk_bf16_f32 v20, v32, v33", rd=[32, 33], wr=[20])
    valu("v_cvt_pk_bf16_f32 v21, v34, v35", rd=[34, 35], wr=[21])
    I("buffer_store_dwordx2 v[20:21], v7, %s, %s offen" % (sr(SRQ, 4), sr(sT2)), 'vmem', rd=[20, 21, 7])
    E.label("L_end", flush=False)
    E.raw("s_endpgm")
    E.mark('END')
    sched = [('P0', 'K0', {})] + [('K0', 'K1', {'it': it}) for it in range(4)] + [('K1', 'V0', {})] + \
            [('V0', 'V1', {'g': g}) for g in range(2)] + [('V1', 'END', {})]
    E.resolve(sched)
    out = HEADER
    out += "; @launch grid=(256,1,1) block=(512,1,1) lds=16384\n"
    out += '.amdgcn_target "amdgcn-amd-amdhsa--gfx950"\n.text\n.globl %s\n.p2align 8\n.type %s,@function\n%s:\n' % (KN, KN, KN)
    out += E.text()
    out += """.section .rodata,"a"
.p2align 6
.amdhsa_kernel %s
  .amdhsa_next_free_vgpr 256
  .amdhsa_next_free_sgpr 72
  .amdhsa_accum_offset 256
  .amdhsa_group_segment_fixed_size 0
  .amdhsa_kernarg_size 64
  .amdhsa_user_sgpr_count 2
  .amdhsa_user_sgpr_kernarg_segment_ptr 1
  .amdhsa_system_sgpr_workgroup_id_x 1
.end_amdhsa_kernel
""" % KN
    open(path, "w").write(out)

if __name__ == "__main__":
    gen(sys.argv[1] if len(sys.argv) > 1 else "standalone__low_rank_proj_linformer__sampling.s")
```

```python
from gen import gen
import sys
gen("k_st.s", stamps=True)
gen("k_r0.s", rotmode=0)
gen("k_r1.s", rotmode=1)
gen("k_r2.s", rotmode=2)
gen("k_r3.s", rotmode=3)
gen("k_sc1nt.s", ntflag="sc1 nt")
gen("k_sc01nt.s", ntflag="sc0 sc1 nt")
```

```python
import re

class Emitter:
    def __init__(self):
        self.items = []
        self.pos = 0
        self.vw = {}
        self.cread = {}
        self.sw = {}
        self.storedata = {}

    def raw(self, text, states=1):
        self.items.append(dict(text=text, kind='raw'))
        self.pos += states

    def comment(self, text):
        self.items.append(dict(text='; ' + text, kind='comment'))

    def nop(self, n):
        while n > 0:
            k = min(n, 16)
            self.items.append(dict(text='s_nop %d' % (k - 1), kind='raw'))
            self.pos += k
            n -= k

    def label(self, name, flush=True):
        if flush:
            self.flush()
        self.items.append(dict(text=name + ':', kind='label', name=name))

    def flush(self):
        need = 0
        for r, (p, t, o) in self.vw.items():
            req = {'valu': 2, 'dot': 3, 'trans': 2, 'mfma': 8}[t]
            need = max(need, req - (self.pos - p - 1))
        for r, p in self.cread.items():
            need = max(need, 3 - (self.pos - p - 1))
        for r, p in self.sw.items():
            need = max(need, 5 - (self.pos - p - 1))
        for r, p in self.storedata.items():
            need = max(need, 2 - (self.pos - p - 1))
        if need > 0:
            self.nop(need)

    def _need(self, r, req):
        return req

    def ins(self, text, kind, rd=(), wr=(), dpp=(), srd=(), swr=(), creads=(), op=None, lanesel=()):
        op = op or text.split()[0]
        need = 0
        def gap(p): return self.pos - p - 1
        allrd = list(rd) + list(dpp) + list(creads)
        for r in allrd:
            if r in self.vw:
                p, t, o = self.vw[r]
                req = 0
                if t in ('valu', 'trans'):
                    if r in dpp: req = 2
                    if kind == 'mfma': req = 2
                    if kind == 'perml': req = 2
                    if kind == 'rdlane': req = max(req, 1)
                    if t == 'trans' and kind != 'trans': req = max(req, 1)
                elif t == 'dot':
                    if kind == 'dot' and o == op and r in creads and r not in rd and r not in dpp: req = 0
                    else: req = 3
                elif t == 'mfma':
                    if kind == 'mfma' and r in creads and r not in rd: req = 0
                    else: req = 8
                need = max(need, req - gap(p))
        for r in wr:
            if r in self.vw:
                p, t, o = self.vw[r]
                req = 0
                if t == 'dot' and not (kind == 'dot' and o == op): req = 3
                if t == 'mfma' and not (kind == 'mfma' and r in creads): req = 8
                need = max(need, req - gap(p))
            if r in self.cread and kind != 'mfma':
                need = max(need, 3 - gap(self.cread[r]))
            if r in self.storedata:
                need = max(need, 2 - gap(self.storedata[r]))
        for s in srd:
            if s in self.sw:
                req = 5 if kind in ('vmem',) else 2
                if s in lanesel: req = 4
                if kind == 'salu': req = 1
                need = max(need, req - gap(self.sw[s]))
        if need > 0:
            self.nop(need)
        self.items.append(dict(text=text, kind=kind))
        here = self.pos
        self.pos += 1
        ptype = {'valu': 'valu', 'dot': 'dot', 'trans': 'trans', 'mfma': 'mfma', 'perml': 'valu', 'rdlane': None,
                 'vmem': None, 'ds': None, 'salu': None}[kind]
        for r in wr:
            if ptype: self.vw[r] = (here, ptype, op)
            else: self.vw.pop(r, None)
        if kind == 'mfma':
            for r in creads: self.cread[r] = here
        for s in swr:
            self.sw[s] = here
        return len(self.items) - 1

    def load(self, text, tag, rd=(), wr=(), srd=(), cond=None, nocount=False):
        idx = self.ins(text, 'vmem', rd=rd, wr=wr, srd=srd)
        self.items[idx].update(vm='load', tag=tag, cond=cond, nocount=nocount)

    def vmwait(self, tags):
        self.items.append(dict(text=None, kind='vmwait', tags=list(tags), n=63))
        self.pos += 1

    def mark(self, name):
        self.items.append(dict(text=None, kind='mark', name=name))

    def resolve(self, schedule):
        marks = {it['name']: i for i, it in enumerate(self.items) if it['kind'] == 'mark'}
        issued = 0
        last = {}
        for (a, b, env) in schedule:
            for i in range(marks[a], marks[b]):
                it = self.items[i]
                if it.get('vm') == 'load':
                    if it['cond'] is not None and not it['cond'](env):
                        continue
                    if it.get('nocount'):
                        last[it['tag']] = issued - 1
                        continue
                    last[it['tag']] = issued
                    issued += 1
                elif it['kind'] == 'vmwait':
                    for t in it['tags']:
                        assert t in last, ("wait on never-loaded tag", t)
                        it['n'] = min(it['n'], issued - last[t] - 1)

    def text(self):
        out = []
        for it in self.items:
            k = it['kind']
            if k == 'mark': continue
            if k == 'vmwait':
                out.append('    s_waitcnt vmcnt(%d)' % it['n'])
            elif k == 'label':
                out.append(it['text'])
            else:
                out.append('    ' + it['text'])
        return '\n'.join(out) + '\n'

def vr(a, n=1):
    return 'v%d' % a if n == 1 else 'v[%d:%d]' % (a, a + n - 1)
def sr(a, n=1):
    return 's%d' % a if n == 1 else 's[%d:%d]' % (a, a + n - 1)
def rng(a, n):
    return list(range(a, a + n))
```

```python
import sys
from asmlib import *

KN = "standalone__low_rank_proj_linformer__sampling_kernel"

HEADER = """; Kernarg layout for this problem (64 bytes, ptrs only, base s[0:1]):
; Algorithm (exact re-association of the reference):
; One workgroup (8 waves) per pair of heads; K then V are streamed once with a 32-deep register ring per wave.
"""

def gen(path, rotmode=0, ntflag="nt", stamps=False, bar=0, nullE=False, nullF=False, xorrot=False):
    E = Emitter()
    I = E.ins
    vL, vMain, vE_, vF, vMB = 0, 1, 2, 3, 4
    T5, T6, T7 = 5, 6, 7
    SEL = 8
    Q = 12; O = 12
    P = 20; W = 20; D = 24
    T = 28
    S = 32; PD = 32
    ES = 48; BB = 48
    FS = 64
    RING = 128
    sW = 3
    sQ, sK, sV, sE, sF, sO = 4, 6, 8, 10, 12, 14
    SRM, SRE, SRF, SRQ = 16, 20, 24, 28
    sBase, sRot, sCur, sM0, sM1, sEo, sT, sG = 32, 33, 34, 35, 36, 37, 38, 39
    sPerm, sHi, sC = 40, 41, 42
    sR0, sR1 = 44, 45
    sW64 = 46
    sT2 = 47
    LDS_PART, LDS_PD, LDS_OP = 0, 4096, 8192

    def salu(t, srd=()): I(t, 'salu', srd=srd)
    def valu(t, rd=(), wr=(), srd=(), swr=()): I(t, 'valu', rd=rd, wr=wr, srd=srd, swr=swr)
    def dpp(t, dp, rd=(), wr=()): I(t, 'valu', rd=rd, wr=wr, dpp=dp)

    def slot(x, hh, t): return RING + 4 * (x * 16 + hh * 8 + t)
    def main_load(x, hh, t):
        r = slot(x, hh, t)
        E.load("buffer_load_dwordx4 %s, %s, %s, %s offen offset:%d %s" % (
            vr(r, 4), vr(vMain), sr(SRM, 4), sr(sM1 if hh else sM0), t * 256, ntflag),
            tag=('m', x, hh, t), rd=[vMain], wr=rng(r, 4))
    def main_base(add):
        salu("s_add_u32 %s, %s, %d" % (sr(sM0), sr(sCur), add))
        salu("s_and_b32 %s, %s, 7" % (sr(sM0), sr(sM0)))
        salu("s_lshl_b32 %s, %s, 16" % (sr(sM0), sr(sM0)))
        salu("s_add_u32 %s, %s, %s" % (sr(sM0), sr(sM0), sr(sBase)))
        salu("s_add_u32 %s, %s, 0x80000" % (sr(sM1), sr(sM0)))
    def e_loads(add, cond=None):
        salu("s_add_u32 %s, %s, %d" % (sr(sEo), sr(sCur), add))
        salu("s_and_b32 %s, %s, 7" % (sr(sEo), sr(sEo)))
        salu("s_lshl_b32 %s, %s, 9" % (sr(sEo), sr(sEo)))
        salu("s_add_u32 %s, %s, %s" % (sr(sEo), sr(sEo), sr(sW64)))
        for rt in range(4):
            if rt: salu("s_add_u32 %s, %s, 0x10000" % (sr(sEo), sr(sEo)))
            E.load("buffer_load_dwordx4 %s, %s, %s, %s offen" % (vr(ES + 4 * rt, 4), vr(vE_), sr(SRE, 4), sr(sEo)),
                   tag=('e', rt), rd=[vE_], wr=rng(ES + 4 * rt, 4), cond=cond)
    def f_load(u):
        salu("s_add_u32 %s, %s, %d" % (sr(sT), sr(sW64), u * 4096))
        E.load("buffer_load_dwordx4 %s, %s, %s, %s offen" % (vr(FS + 4 * u, 4), vr(vF), sr(SRF, 4), sr(sT)),
               tag=('f', u), rd=[vF], wr=rng(FS + 4 * u, 4))

    def stamp(n):
        if stamps:
            E.raw("s_memrealtime s[%d:%d]" % (50 + 2 * n, 51 + 2 * n))
    E.mark('P0')
    salu("s_cmp_ge_u32 s2, 256")
    salu("s_cbranch_scc1 L_end")
    stamp(0)
    salu("s_load_dwordx8 s[4:11], s[0:1], 0")
    salu("s_load_dwordx4 s[12:15], s[0:1], 32")
    valu("v_lshrrev_b32 v5, 6, v0", rd=[0], wr=[5])
    valu("v_and_b32 v0, 63, v0", rd=[0], wr=[0])
    I("v_readfirstlane_b32 s3, v5", 'rdlane', rd=[5], swr=[3])
    valu("v_and_b32 v5, 15, v0", rd=[0], wr=[5])
    valu("v_lshrrev_b32 v6, 4, v0", rd=[0], wr=[6])
    valu("v_lshlrev_b32 v7, 4, v5", rd=[5], wr=[7])
    valu("v_lshl_add_u32 v1, v6, 11, v7", rd=[6, 7], wr=[1])
    salu("s_lshl_b32 %s, s2, 20" % sr(sBase))
    salu("s_lshl_b32 %s, s3, 13" % sr(sT), srd=[3])
    salu("s_add_u32 %s, %s, %s" % (sr(sBase), sr(sBase), sr(sT)))
    salu("s_lshl_b32 %s, s3, 6" % sr(sW64))
    if rotmode == 0:
        salu("s_mov_b32 %s, 0" % sr(sRot))
    elif rotmode == 1:
        salu("s_and_b32 %s, s2, 7" % sr(sRot))
    elif rotmode == 2:
        salu("s_lshr_b32 %s, s2, 3" % sr(sRot))
        salu("s_and_b32 %s, %s, 7" % (sr(sRot), sr(sRot)))
    elif rotmode == 3:
        salu("s_lshl_b32 %s, s2, 1" % sr(sRot))
        salu("s_and_b32 %s, %s, 7" % (sr(sRot), sr(sRot)))
    salu("s_mov_b32 %s, %s" % (sr(sCur), sr(sRot)))
    salu("s_mov_b32 s18, 0x10000000")
    salu("s_mov_b32 s19, 0x00020000")
    salu("s_mov_b32 s30, 0x20000")
    salu("s_mov_b32 s31, 0x00020000")
    salu("s_lshl_b32 %s, s2, 9" % sr(sT2))
    main_base(0)
    E.raw("s_waitcnt lgkmcnt(0)")
    salu("s_mov_b32 s16, s6")
    salu("s_mov_b32 s17, s7")
    salu("s_mov_b32 s28, s4")
    salu("s_mov_b32 s29, s5")
    for hh in range(2):
        E.load("buffer_load_dwordx4 %s, v7, %s, %s offen offset:%d" % (vr(Q + 4 * hh, 4), sr(SRQ, 4), sr(sT2), hh * 256),
               tag=('q', hh), rd=[7], wr=rng(Q + 4 * hh, 4))
    for hh in range(2):
        for t in range(8): main_load(0, hh, t)
    salu("s_mov_b32 s20, s10"); salu("s_mov_b32 s21, s11"); salu("s_mov_b32 s22, %s" % ("0" if nullE else "0x40000")); salu("s_mov_b32 s23, 0x00020000")
    salu("s_mov_b32 s24, s12"); salu("s_mov_b32 s25, s13"); salu("s_mov_b32 s26, %s" % ("0" if nullF else "0x40000")); salu("s_mov_b32 s27, 0x00020000")
    valu("v_lshlrev_b32 v2, 12, v5", rd=[5], wr=[2])
    valu("v_lshl_add_u32 v2, v6, 4, v2", rd=[6, 2], wr=[2])
    valu("v_lshrrev_b32 v3, 2, v5", rd=[5], wr=[3])
    valu("v_add_u32 v3, %s, v3" % sr(sRot), rd=[3], wr=[3])
    valu("v_and_b32 v3, 7, v3", rd=[3], wr=[3])
    valu("v_lshlrev_b32 v3, 9, v3", rd=[3], wr=[3])
    valu("v_lshl_add_u32 v3, v6, 16, v3", rd=[6, 3], wr=[3])
    valu("v_and_b32 v4, 3, v5", rd=[5], wr=[4])
    valu("v_lshl_add_u32 v3, v4, 4, v3", rd=[4, 3], wr=[3])
    for u in range(4): f_load(u)
    main_base(1)
    for hh in range(2):
        for t in range(8): main_load(1, hh, t)
    e_loads(0)
    for u in range(4, 16): f_load(u)
    valu("v_xor_b32 v3, 0x800, v3", rd=[3], wr=[3])
    salu("s_mov_b32 %s, 0x07060302" % sr(sPerm))
    salu("s_mov_b32 %s, 0xffff0000" % sr(sHi))
    import struct, math
    c = (128 ** -0.5) * math.log2(math.e)
    salu("s_mov_b32 %s, 0x%08x" % (sr(sC), struct.unpack('<I', struct.pack('<f', c))[0]))
    valu("v_and_b32 v4, 1, v5", rd=[5], wr=[4])
    valu("v_mul_u32_u24 v28, 16, v4", rd=[4], wr=[28])
    valu("v_sub_u32 v4, 0, v4", rd=[4], wr=[4])
    valu("v_and_b32 v4, 0xffff0000, v4", rd=[4], wr=[4])
    valu("v_lshrrev_b32 v29, 3, v5", rd=[5], wr=[29])
    valu("v_mul_u32_u24 v29, 0x0202, v29", rd=[29], wr=[29])
    valu("v_sub_u32 v29, 0x0302, v29", rd=[29], wr=[29])
    valu("v_lshlrev_b32 v29, v28, v29", rd=[28, 29], wr=[29])
    valu("v_mov_b32 v30, 0x0c0c0000", wr=[30])
    valu("v_lshrrev_b32 v30, v28, v30", rd=[28, 30], wr=[30])
    valu("v_or_b32 v29, v29, v30", rd=[29, 30], wr=[29])
    valu("v_bfe_u32 v30, v5, 1, 2", rd=[5], wr=[30])
    valu("v_mov_b32 v31, 0x0c0c0c0c", wr=[31])
    for k in range(4):
        valu("v_cmp_eq_u32 vcc, %d, v30" % k, rd=[30], swr=['vcc'])
        valu("v_cndmask_b32 %s, v31, v29, vcc" % vr(SEL + k), rd=[31, 29], wr=[SEL + k], srd=['vcc'])
    for r in range(16):
        valu("v_mov_b32 %s, 0" % vr(S + r), wr=[S + r])
    salu("s_mov_b32 %s, 0" % sr(sG))
    E.vmwait([('q', 0), ('q', 1)])
    stamp(1)
    E.mark('K0')
    E.label("L_kloop")
    salu("s_cmp_eq_u32 %s, 3" % sr(sG))
    salu("s_cselect_b32 s16, s8, s6")
    salu("s_cselect_b32 s17, s9, s7")
    for x in range(2):
        main_base(x + 2)
        pend = []
        def red(t, lvl):
            p = P + t
            if lvl == 0:
                dpp("v_add_f32_dpp %s, %s, %s row_ror:8 row_mask:0xf bank_mask:0x3" % (vr(p), vr(p), vr(p)), [p], rd=[p], wr=[p])
            elif lvl == 1:
                tt = T + (t & 1)
                dpp("v_add_f32_dpp %s, %s, %s row_ror:8 row_mask:0xf bank_mask:0xc" % (vr(p), vr(tt), vr(tt)), [tt], rd=[tt, p], wr=[p])
            elif lvl == 2:
                dpp("v_add_f32_dpp %s, %s, %s row_half_mirror row_mask:0xf bank_mask:0xf" % (vr(p), vr(p), vr(p)), [p], rd=[p], wr=[p])
            elif lvl == 3:
                dpp("v_add_f32_dpp %s, %s, %s quad_perm:[1,0,3,2] row_mask:0xf bank_mask:0xf" % (vr(p), vr(p), vr(p)), [p], rd=[p], wr=[p])
            elif lvl == 4:
                dpp("v_add_f32_dpp %s, %s, %s quad_perm:[2,3,0,1] row_mask:0xf bank_mask:0xf" % (vr(p), vr(p), vr(p)), [p], rd=[p], wr=[p])
            elif lvl == 5:
                valu("v_and_b32 %s, %s, %s" % (vr(30 + (t & 1)), vr(p), vr(vMB)), rd=[p, vMB], wr=[30 + (t & 1)])
                valu("v_sub_f32 %s, %s, %s" % (vr(p), vr(p), vr(30 + (t & 1))), rd=[p, 30 + (t & 1)], wr=[p])
        for hh in range(2):
            for t in range(8):
                r = slot(x, hh, t)
                dst = (P + t) if hh == 0 else (T + (t & 1))
                E.vmwait([('m', x, hh, t)])
                for k in range(4):
                    c_ = "0" if k == 0 else vr(dst)
                    I("v_dot2_f32_bf16 %s, %s, %s, %s" % (vr(dst), vr(r + k), vr(Q + 4 * hh + k), c_), 'dot',
                      rd=[r + k, Q + 4 * hh + k], wr=[dst], creads=([dst] if k else []))
                main_load(x, hh, t)
                if hh == 0:
                    if t >= 1: red(t - 1, 0)
                else:
                    if t == 0: red(7, 0)
                    for lvl in range(1, 6):
                        tt = t - lvl
                        if tt >= 0: red(tt, lvl)
        for step in range(1, 6):
            for lvl in range(step, 6):
                tt = 7 + step - lvl
                if 0 <= tt <= 7 and lvl >= step: red(tt, lvl)
        for k in range(4):
            valu("v_perm_b32 %s, %s, %s, %s" % (vr(P + k), vr(P + 2 * k + 1), vr(P + 2 * k), sr(sPerm)),
                 rd=[P + 2 * k, P + 2 * k + 1], wr=[P + k])
        E.vmwait([('e', rt) for rt in range(4)])
        for rt in range(4):
            I("v_mfma_f32_16x16x32_bf16 %s, %s, %s, %s" % (vr(S + 4 * rt, 4), vr(ES + 4 * rt, 4), vr(P, 4), vr(S + 4 * rt, 4)), 'mfma',
              rd=rng(ES + 4 * rt, 4) + rng(P, 4), wr=rng(S + 4 * rt, 4), creads=rng(S + 4 * rt, 4))
        if x == 1:
            salu("s_cmp_eq_u32 %s, 3" % sr(sG))
            salu("s_cbranch_scc1 L_kdone")
            e_loads(x + 1, cond=lambda env: env['it'] != 3)
            if bar: E.raw("s_barrier")
        else:
            e_loads(x + 1)
            if bar == 1: E.raw("s_barrier")
    salu("s_add_u32 %s, %s, 2" % (sr(sCur), sr(sCur)))
    salu("s_add_u32 %s, %s, 1" % (sr(sG), sr(sG)))
    E.flush()
    salu("s_branch L_kloop")
    E.mark('K1')
    E.label("L_kdone")
    E.nop(8)
    stamp(2)
    salu("s_add_u32 %s, %s, 2" % (sr(sCur), sr(sCur)))
    for r in range(16):
        dpp("v_add_f32_dpp %s, %s, %s quad_perm:[1,0,3,2] row_mask:0xf bank_mask:0xf" % (vr(S + r), vr(S + r), vr(S + r)),
            [S + r], rd=[S + r], wr=[S + r])
    valu("v_bfe_u32 v5, v0, 3, 1", rd=[0], wr=[5])
    valu("v_lshrrev_b32 v6, 4, v0", rd=[0], wr=[6])
    valu("v_lshlrev_b32 v7, 8, v5", rd=[5], wr=[7])
    valu("v_lshl_add_u32 v7, v6, 4, v7", rd=[6, 7], wr=[7])
    salu("s_lshl_b32 %s, s3, 9" % sr(sT))
    valu("v_add_u32 v7, %s, v7" % sr(sT), rd=[7], wr=[7])
    salu("s_mov_b32 exec_lo, 0x01010101")
    salu("s_mov_b32 exec_hi, 0x01010101")
    for rt in range(4):
        I("ds_write_b128 v7, %s offset:%d" % (vr(S + 4 * rt, 4), LDS_PART + rt * 64), 'ds', rd=[7] + rng(S + 4 * rt, 4))
    salu("s_mov_b64 exec, -1")
    valu("v_lshlrev_b32 v7, 2, v0", rd=[0], wr=[7])
    for r in range(8):
        valu("v_mov_b32 %s, 0" % vr(O + r), wr=[O + r])
    E.raw("s_waitcnt lgkmcnt(0)")
    E.raw("s_barrier")
    for w in range(8):
        I("ds_read2st64_b32 %s, v7 offset0:%d offset1:%d" % (vr(S + 2 * w, 2), 2 * w, 2 * w + 1), 'ds', rd=[7], wr=rng(S + 2 * w, 2))
    salu("s_lshl_b32 %s, s3, 8" % sr(sT))
    valu("v_add_u32 v7, %s, v7" % sr(sT), rd=[7], wr=[7])
    valu("v_lshlrev_b32 v6, 6, v6", rd=[6], wr=[6])
    valu("v_add_u32 v6, %s, v6" % sr(sT), rd=[6], wr=[6])
    E.raw("s_waitcnt lgkmcnt(0)")
    step = 1
    while step < 8:
        for w in range(0, 8, 2 * step):
            a, b = S + 2 * w, S + 2 * (w + step)
            valu("v_pk_add_f32 %s, %s, %s" % (vr(a, 2), vr(a, 2), vr(b, 2)), rd=rng(a, 2) + rng(b, 2), wr=rng(a, 2))
        step *= 2
    X0, X1, M0, M1 = S, S + 1, S + 2, S + 3
    def wave_reduce(op, src0, src1, d0, d1):
        ctl = ["quad_perm:[1,0,3,2] row_mask:0xf bank_mask:0xf", "quad_perm:[2,3,0,1] row_mask:0xf bank_mask:0xf",
               "row_half_mirror row_mask:0xf bank_mask:0xf", "row_mirror row_mask:0xf bank_mask:0xf",
               "row_bcast:15 row_mask:0xa bank_mask:0xf", "row_bcast:31 row_mask:0xc bank_mask:0xf"]
        for n, c_ in enumerate(ctl):
            for (s_, d_) in ((src0, d0), (src1, d1)):
                s = s_ if n == 0 else d_
                dpp("%s_dpp %s, %s, %s %s" % (op, vr(d_), vr(s), vr(s), c_), [s], rd=[s, d_], wr=[d_])
        I("v_readlane_b32 %s, %s, 63" % (sr(sR0), vr(d0)), 'rdlane', rd=[d0], swr=[sR0])
        I("v_readlane_b32 %s, %s, 63" % (sr(sR1), vr(d1)), 'rdlane', rd=[d1], swr=[sR1])
    wave_reduce("v_max_f32", X0, X1, M0, M1)
    valu("v_subrev_f32 %s, %s, %s" % (vr(X0), sr(sR0), vr(X0)), rd=[X0], wr=[X0], srd=[sR0])
    valu("v_subrev_f32 %s, %s, %s" % (vr(X1), sr(sR1), vr(X1)), rd=[X1], wr=[X1], srd=[sR1])
    valu("v_mul_f32 %s, %s, %s" % (vr(X0), sr(sC), vr(X0)), rd=[X0], wr=[X0])
    valu("v_mul_f32 %s, %s, %s" % (vr(X1), sr(sC), vr(X1)), rd=[X1], wr=[X1])
    I("v_exp_f32 %s, %s" % (vr(X0), vr(X0)), 'trans', rd=[X0], wr=[X0])
    I("v_exp_f32 %s, %s" % (vr(X1), vr(X1)), 'trans', rd=[X1], wr=[X1])
    wave_reduce("v_add_f32", X0, X1, M0, M1)
    I("v_rcp_f32 %s, %s" % (vr(M0), sr(sR0)), 'trans', wr=[M0], srd=[sR0])
    I("v_rcp_f32 %s, %s" % (vr(M1), sr(sR1)), 'trans', wr=[M1], srd=[sR1])
    valu("v_mul_f32 %s, %s, %s" % (vr(X0), vr(X0), vr(M0)), rd=[X0, M0], wr=[X0])
    valu("v_mul_f32 %s, %s, %s" % (vr(X1), vr(X1), vr(M1)), rd=[X1, M1], wr=[X1])
    valu("v_cvt_pk_bf16_f32 %s, %s, %s" % (vr(M0), vr(X1), vr(X0)), rd=[X0, X1], wr=[M0])
    I("ds_write_b32 v7, %s offset:%d" % (vr(M0), LDS_PD), 'ds', rd=[7, M0])
    salu("s_mov_b32 %s, 0" % sr(sG))
    E.raw("s_waitcnt lgkmcnt(0)")
    stamp(3)
    E.mark('V0')
    E.label("L_vloop")
    for k in range(4):
        I("ds_read_b128 %s, v6 offset:%d" % (vr(PD + 4 * k, 4), LDS_PD + 16 * k), 'ds', rd=[6], wr=rng(PD + 4 * k, 4))
    salu("s_cmp_eq_u32 %s, 0" % sr(sG))
    salu("s_cselect_b32 s26, %s, 0" % ("0" if nullF else "0x40000"))
    E.raw("s_waitcnt lgkmcnt(0)")
    def build_b(src, buf):
        for k in range(4):
            valu("v_perm_b32 %s, %s, %s, %s" % (vr(buf + k), vr(src), vr(src), vr(SEL + k)), rd=[src, SEL + k], wr=[buf + k])
    build_b(PD, BB)
    for u in range(16):
        if u < 15: build_b(PD + u + 1, BB + 4 * ((u + 1) & 3))
        E.vmwait([('f', u)])
        b = BB + 4 * (u & 3)
        c_ = "0" if u == 0 else vr(D, 4)
        I("v_mfma_f32_16x16x32_bf16 %s, %s, %s, %s" % (vr(D, 4), vr(FS + 4 * u, 4), vr(b, 4), c_), 'mfma',
          rd=rng(FS + 4 * u, 4) + rng(b, 4), wr=rng(D, 4), creads=(rng(D, 4) if u else []))
        f_load(u)
    main_base(2)
    I("v_permlane32_swap_b32 %s, %s" % (vr(D), vr(D + 2)), 'perml', rd=[D, D + 2], wr=[D, D + 2])
    I("v_permlane32_swap_b32 %s, %s" % (vr(D + 1), vr(D + 3)), 'perml', rd=[D + 1, D + 3], wr=[D + 1, D + 3])
    I("v_permlane16_swap_b32 %s, %s" % (vr(D), vr(D + 1)), 'perml', rd=[D, D + 1], wr=[D, D + 1])
    I("v_permlane16_swap_b32 %s, %s" % (vr(D + 2), vr(D + 3)), 'perml', rd=[D + 2, D + 3], wr=[D + 2, D + 3])
    for a in range(4):
        valu("v_and_b32 %s, %s, %s" % (vr(W + a), sr(sHi), vr(D + a)), rd=[D + a], wr=[W + a])
        valu("v_sub_f32 %s, %s, %s" % (vr(W + a), vr(D + a), vr(W + a)), rd=[D + a, W + a], wr=[W + a])
        valu("v_perm_b32 %s, %s, %s, %s" % (vr(W + a), vr(D + a), vr(W + a), sr(sPerm)), rd=[D + a, W + a], wr=[W + a])
    seq = [(a, hh, t) for a in range(4) for hh in range(2) for t in range(8)]
    def prep(n):
        a, hh, t = seq[n]
        xr = T + (n & 1)
        dpp("v_mov_b32_dpp %s, %s row_newbcast:%d row_mask:0xf bank_mask:0xf" % (vr(xr), vr(W + a), t + 8 * hh), [W + a], wr=[xr])
        build_b(xr, BB + 4 * (n & 3))
    prep(0)
    for n, (a, hh, t) in enumerate(seq):
        if hh == 0 and t == 0 and a > 0:
            if a == 2:
                salu("s_cmp_eq_u32 %s, 0" % sr(sG))
                salu("s_cselect_b32 s18, 0x10000000, 0")
            main_base(2 + a)
        if n + 1 < len(seq): prep(n + 1)
        x = a & 1
        r = slot(x, hh, t)
        b = BB + 4 * (n & 3)
        E.vmwait([('m', x, hh, t)])
        I("v_mfma_f32_16x16x32_bf16 %s, %s, %s, %s" % (vr(O + 4 * hh, 4), vr(r, 4), vr(b, 4), vr(O + 4 * hh, 4)), 'mfma',
          rd=rng(r, 4) + rng(b, 4), wr=rng(O + 4 * hh, 4), creads=rng(O + 4 * hh, 4))
        main_load(x, hh, t)
        if hh == 1 and t == 7 and bar and (bar == 1 or a & 1): E.raw("s_barrier")
    salu("s_add_u32 %s, %s, 4" % (sr(sCur), sr(sCur)))
    salu("s_add_u32 %s, %s, 1" % (sr(sG), sr(sG)))
    salu("s_cmp_lt_u32 %s, 2" % sr(sG))
    E.flush()
    salu("s_cbranch_scc1 L_vloop")
    E.mark('V1')
    stamp(4)
    R = 20
    for t in range(4):
        dpp("v_add_f32_dpp %s, %s, %s row_ror:8 row_mask:0xf bank_mask:0x3" % (vr(R + t), vr(O + t), vr(O + t)), [O + t], rd=[O + t, R + t], wr=[R + t])
        dpp("v_add_f32_dpp %s, %s, %s row_ror:8 row_mask:0xf bank_mask:0xc" % (vr(R + t), vr(O + 4 + t), vr(O + 4 + t)), [O + 4 + t], rd=[O + 4 + t, R + t], wr=[R + t])
    valu("v_and_b32 v6, 7, v0", rd=[0], wr=[6])
    valu("v_lshlrev_b32 v6, 2, v6", rd=[6], wr=[6])
    valu("v_lshl_add_u32 v6, v5, 9, v6", rd=[5, 6], wr=[6])
    valu("v_lshrrev_b32 v7, 4, v0", rd=[0], wr=[7])
    valu("v_lshl_add_u32 v6, v7, 7, v6", rd=[7, 6], wr=[6])
    salu("s_lshl_b32 %s, s3, 10" % sr(sT))
    valu("v_add_u32 v6, %s, v6" % sr(sT), rd=[6], wr=[6])
    for t in range(4):
        I("ds_write_b32 v6, %s offset:%d" % (vr(R + t), LDS_OP + 32 * t), 'ds', rd=[6, R + t])
    valu("v_lshlrev_b32 v6, 4, v0", rd=[0], wr=[6])
    valu("v_lshlrev_b32 v7, 3, v0", rd=[0], wr=[7])
    salu("s_mov_b32 s28, s14")
    salu("s_mov_b32 s29, s15")
    E.raw("s_waitcnt lgkmcnt(0)")
    E.raw("s_barrier")
    if stamps:
        stamp(5)
        salu("s_load_dwordx2 s[64:65], s[0:1], 56")
        salu("s_getreg_b32 s62, hwreg(HW_REG_XCC_ID)")
        salu("s_getreg_b32 s63, hwreg(HW_REG_HW_ID)")
        E.raw("s_waitcnt lgkmcnt(0)")
        salu("s_mov_b32 s66, 0x100000")
        salu("s_mov_b32 s67, 0x00020000")
        for n in range(6):
            valu("v_mov_b32 v%d, s%d" % (40 + n, 50 + 2 * n), wr=[40 + n])
        valu("v_mov_b32 v46, s62", wr=[46])
        valu("v_mov_b32 v47, s63", wr=[47])
        salu("s_lshl_b32 s62, s2, 9")
        salu("s_lshl_b32 s63, s3, 5")
        salu("s_add_u32 s62, s62, s63")
        valu("v_mov_b32 v39, 0", wr=[39])
        I("buffer_store_dwordx4 v[40:43], v39, s[64:67], s62 offen", 'vmem', rd=[39])
        I("buffer_store_dwordx4 v[44:47], v39, s[64:67], s62 offen offset:16", 'vmem', rd=[39])
        E.raw("s_waitcnt vmcnt(0)")
    salu("s_cmp_lg_u32 s3, 0")
    salu("s_cbranch_scc1 L_end")
    for w in range(8):
        I("ds_read_b128 %s, v6 offset:%d" % (vr(32 + 4 * w, 4), LDS_OP + 1024 * w), 'ds', rd=[6], wr=rng(32 + 4 * w, 4))
    E.raw("s_waitcnt lgkmcnt(0)")
    step = 1
    while step < 8:
        for w in range(0, 8, 2 * step):
            for hf in range(2):
                a, b = 32 + 4 * w + 2 * hf, 32 + 4 * (w + step) + 2 * hf
                valu("v_pk_add_f32 %s, %s, %s" % (vr(a, 2), vr(a, 2), vr(b, 2)), rd=rng(a, 2) + rng(b, 2), wr=rng(a, 2))
        step *= 2
    valu("v_cvt_pk_bf16_f32 v20, v32, v33", rd=[32, 33], wr=[20])
    valu("v_cvt_pk_bf16_f32 v21, v34, v35", rd=[34, 35], wr=[21])
    I("buffer_store_dwordx2 v[20:21], v7, %s, %s offen" % (sr(SRQ, 4), sr(sT2)), 'vmem', rd=[20, 21, 7])
    E.label("L_end", flush=False)
    E.raw("s_endpgm")
    E.mark('END')
    sched = [('P0', 'K0', {})] + [('K0', 'K1', {'it': it}) for it in range(4)] + [('K1', 'V0', {})] + \
            [('V0', 'V1', {'g': g}) for g in range(2)] + [('V1', 'END', {})]
    E.resolve(sched)
    out = HEADER
    out += "; @launch grid=(256,1,1) block=(512,1,1) lds=16384\n"
    out += '.amdgcn_target "amdgcn-amd-amdhsa--gfx950"\n.text\n.globl %s\n.p2align 8\n.type %s,@function\n%s:\n' % (KN, KN, KN)
    out += E.text()
    out += """.section .rodata,"a"
.p2align 6
.amdhsa_kernel %s
  .amdhsa_next_free_vgpr 256
  .amdhsa_next_free_sgpr 72
  .amdhsa_accum_offset 256
  .amdhsa_group_segment_fixed_size 0
  .amdhsa_kernarg_size 64
  .amdhsa_user_sgpr_count 2
  .amdhsa_user_sgpr_kernarg_segment_ptr 1
  .amdhsa_system_sgpr_workgroup_id_x 1
.end_amdhsa_kernel
""" % KN
    open(path, "w").write(out)

if __name__ == "__main__":
    gen(sys.argv[1] if len(sys.argv) > 1 else "standalone__low_rank_proj_linformer__sampling.s")
```

```python
import sys, struct, math
from asmlib import *
from gen import HEADER, KN

def gen(path, L=3, Lstart=None, Lmid=10, midramp=4, LK=None, LV1=None, LV2=None, ntflag="nt", stamps=False,
        nullE=False, nullF=False, wgmix=0, warm=1, emode='B', tailboost=0, epos=None, fposK=None, fposV=None, pbit=2, hsplit=0, dbgst=False, endn=0, Lend=6, body_only=False, suffix='', tlbw=0, fb=1, ck_every=1, dyn=((1, 4, 0), (3, 3, 1)), mapk=5, dly=(5, 8, 9), force_mode=None, counted=False, noatom=False, satom=False, G=16, table=None, dynper=4, pi=None, cks=None, center=2, initat=None, warmat=None):
    E = Emitter()
    I = E.ins
    vMain, vE_, vF, vMB = 1, 2, 3, 4
    SEL = 8
    Q = 12; O = 12
    P = 20; W = 20
    T = 28
    PD = 32
    BB = 48
    BE = 48
    RING = 64
    FS = 128
    ES = 192
    S = 224
    SRM_K, SRM_V, SRE, SRF, SRQ = 16, 48, 20, 24, 28
    sBase, sEo, sT = 32, 37, 38
    sBaseO, sPW, sEa, sEb = 33, 36, 43, 72
    sHD, sQ1 = 73, 74
    sM = [[34, 35], [52, 53]]
    sPerm, sHi, sC = 40, 41, 42
    sR0, sR1 = 44, 45
    sW128 = 46
    sT2 = 47
    sWG = 39
    sHF = 54
    LDS_PART, LDS_PD, LDS_OP = 0, 8192, 12288
    LDS_MODE = 10240 + 1024
    vCnt, vInit, vRet, vMd = 52, 53, 54, 55
    sMode, sRk = 75, 43
    vZero = 56
    SRW = 76
    STB = 56

    def salu(t, srd=()): I(t, 'salu', srd=srd)
    def valu(t, rd=(), wr=(), srd=(), swr=()): I(t, 'valu', rd=rd, wr=wr, srd=srd, swr=swr)
    def dpp(t, dp, rd=(), wr=()): I(t, 'valu', rd=rd, wr=wr, dpp=dp)
    def stamp(n):
        if stamps or dbgst:
            E.raw("s_memrealtime s[%d:%d]" % (STB + 2 * n, STB + 1 + 2 * n))

    def decode(m):
        ph, r = m >> 7, m & 127
        bt, j = r >> 4, r & 15
        return ph, bt, j >> 3, j & 7
    def slot(m): return RING + 4 * (m & 15)
    state = dict(issued=0, based=-1)
    def main_base(gb):
        a, b = sM[gb & 1]
        bt = gb & 7
        off = (bt >> 1) * 131072
        sb = sBaseO if (bt & 1) else sBase
        salu("s_add_u32 %s, %s, %d" % (sr(a), sr(sb), off))
        if hsplit == 2:
            salu("s_add_u32 %s, %s, %s" % (sr(b), sr(a), sr(sHD)))
        else:
            salu("s_add_u32 %s, %s, %d" % (sr(b), sr(sb), off + (0x8000000 if hsplit else 0x80000)))
    def issue_upto(mx):
        mx = min(mx, 255)
        while state['issued'] <= mx:
            m = state['issued']
            ph, bt, hh, t = decode(m)
            gb = m >> 4
            if state['based'] < gb:
                main_base(gb); state['based'] = gb
            r = slot(m)
            E.load("buffer_load_dwordx4 %s, %s, %s, %s offen offset:%d %s" % (
                vr(r, 4), vr(vMain), sr(SRM_V if ph else SRM_K, 4), sr(sM[gb & 1][hh]), t * 256, ntflag),
                tag=('m', m), rd=[vMain], wr=rng(r, 4))
            state['issued'] += 1
    def e_load(k, n):
        if emode == 'B':
            so, io = n * 32768, k * 1024
        else:
            so, io = (n >> 1) * 65536, k * 1024
        salu("s_add_u32 %s, %s, %d" % (sr(sEo), sr(sW128 if emode == 'B' else (sEb if n & 1 else sEa)), so))
        E.load("buffer_load_dwordx4 %s, %s, %s, %s offen offset:%d" % (vr(ES + 4 * n, 4), vr(vE_), sr(SRE, 4), sr(sEo), io),
               tag=('e', k, n), rd=[vE_], wr=rng(ES + 4 * n, 4))
    def f_load(n):
        g, u = n >> 4, n & 15
        salu("s_add_u32 %s, %s, %d" % (sr(sT), sr(sW128), u * 4096))
        E.load("buffer_load_dwordx4 %s, %s, %s, %s offen offset:%d" % (vr(FS + 4 * u, 4), vr(vF), sr(SRF, 4), sr(sT), g * 2048),
               tag=('f', n), rd=[vF], wr=rng(FS + 4 * u, 4))

    def look(m):
        base = L
        ph_l = LK if m < 128 else (LV1 if m < 192 else LV2)
        if ph_l is not None: base = ph_l[m % len(ph_l)]
        if endn and m >= 256 - endn: base = Lend
        if Lstart and m < Lstart: base = max(base, Lstart - m)
        if tailboost and m < 128 and (m & 15) == 15: base += tailboost
        if 127 - midramp < m <= 127:
            base = max(base, L + (Lmid - L) * (m - (127 - midramp)) // midramp)
        return min(base, 15)

    LA = 4
    lab = [0]
    dynmap = {j: (hi, lo) for (j, hi, lo) in dyn}
    def step_wait_issue(m):
        lk = look(m)
        if lk != 3 or not fb:
            E.vmwait([('m', m)]); issue_upto(m + lk); return
        tgt = m + LA
        if tgt > 255 or state['issued'] > tgt:
            E.vmwait([('m', m)]); return
        if state['issued'] < tgt:
            E.vmwait([('m', m)]); issue_upto(tgt - 1)
        j = m % dynper
        if j in dynmap:
            hi, lo = dynmap[j]
            name = "L_d%d%s" % (lab[0], suffix); lab[0] += 1
            E.vmwait([('m', m)])
            salu("s_cmp_ge_u32 %s, %d" % (sr(sMode), hi))
            salu("s_cbranch_scc1 %s" % name)
            E.vmwait([('m', m + 1)])
            salu("s_cmp_gt_u32 %s, %d" % (sr(sMode), lo))
            salu("s_cbranch_scc1 %s" % name)
            E.vmwait([('m', m + 2)])
            E.pos -= 4
            E.label(name, flush=False)
        else:
            E.vmwait([('m', m + 1)])
        issue_upto(tgt)
    def is_ck(b):
        if cks is not None: return b in cks
        return 0 <= b < 15 and (b % ck_every) == ck_every - 1 and b != 7
    regs = dict(cnt=vCnt, init=vInit, ret=vRet, md=vMd)
    def init_load():
        salu("s_mov_b64 exec, 0xffff")
        E.load("buffer_load_dword %s, %s, %s, 0 offen sc1" % (vr(vInit), vr(vCnt), sr(SRW, 4)), tag=('i', 0), rd=[vCnt], wr=[vInit])
        salu("s_mov_b64 exec, -1")
    def warm_load():
        salu("s_lshr_b32 %s, s2, 3" % sr(sT))
        salu("s_and_b32 %s, %s, 31" % (sr(sT), sr(sT)))
        salu("s_lshl_b32 %s, %s, 3" % (sr(sT), sr(sT)))
        salu("s_add_u32 %s, %s, s3" % (sr(sT), sr(sT)))
        salu("s_lshl_b32 %s, %s, 10" % (sr(sT), sr(sT)))
        valu("v_lshlrev_b32 v57, 4, v0", rd=[0], wr=[57])
        E.load("buffer_load_dwordx4 %s, v57, %s, %s offen" % (vr(PD, 4), sr(SRE, 4), sr(sT)), tag=('w', 0), rd=[57], wr=rng(PD, 4))
        E.load("buffer_load_dwordx4 %s, v57, %s, %s offen" % (vr(PD + 4, 4), sr(SRF, 4), sr(sT)), tag=('w', 1), rd=[57], wr=rng(PD + 4, 4))
    def fb_hooks(m):
        if warm and warmat == m: warm_load()
        if not fb: return
        if initat == m: init_load()
        gb, j = m >> 4, m & 15
        if j == 15 and is_ck(gb):
            if satom:
                name = "L_a%d%s" % (lab[0], suffix); lab[0] += 1
                salu("s_cmp_lg_u32 s3, 0")
                salu("s_cbranch_scc1 %s" % name)
                I("v_readlane_b32 s83, %s, %d" % (vr(regs['cnt']), gb), 'rdlane', rd=[regs['cnt']], swr=[83])
                salu("s_mov_b32 %s, 1" % sr(sRk))
                E.nop(4)
                salu("s_and_b32 s83, s83, 0xfff80")
                salu("s_atomic_add %s, s[76:77], s83 glc" % sr(sRk))
                E.pos -= 8
                E.label(name, flush=False)
            elif not noatom:
                salu("s_mov_b64 exec, 0x%x" % (1 << gb))
                E.load("buffer_atomic_add %s, %s, %s, 0 offen sc0 sc1" % (vr(regs['ret']), vr(regs['cnt']), sr(SRW, 4)),
                       tag=('a', gb), rd=[regs['ret'], regs['cnt']], wr=[regs['ret']], nocount=not counted)
                salu("s_mov_b64 exec, -1")
        pk = gb - 1
        if is_ck(pk):
            if j == dly[0]:
                if satom:
                    I("v_readlane_b32 s82, %s, %d" % (vr(regs['init']), pk), 'rdlane', rd=[regs['init']], swr=[82])
                    E.raw("s_waitcnt lgkmcnt(0)")
                    salu("s_sub_u32 %s, %s, s82" % (sr(sRk), sr(sRk)), srd=[82])
                else:
                    if not noatom: E.vmwait([('a', pk)])
                    valu("v_sub_u32 %s, %s, %s" % (vr(regs['md']), vr(regs['ret']), vr(regs['init'])), rd=[regs['ret'], regs['init']], wr=[regs['md']])
                    I("v_readlane_b32 %s, %s, %d" % (sr(sRk), vr(regs['md']), pk), 'rdlane', rd=[regs['md']], swr=[sRk])
                salu("s_min_u32 %s, %s, %d" % (sr(sRk), sr(sRk), G - 1), srd=[sRk])
                if pi is not None:
                    kp, sh, amax, umax = pi
                    salu("s_lshl_b32 %s, %s, 1" % (sr(sRk), sr(sRk)))
                    salu("s_sub_i32 %s, %s, %d" % (sr(sRk), sr(sRk), G - 1))
                    salu("s_add_i32 s84, s84, %s" % sr(sRk))
                    salu("s_min_i32 s84, s84, %d" % amax)
                    salu("s_max_i32 s84, s84, %d" % -amax)
                    salu("s_mul_i32 %s, %s, %d" % (sr(sRk), sr(sRk), kp))
                    salu("s_add_i32 %s, %s, s84" % (sr(sRk), sr(sRk)))
                    salu("s_add_i32 %s, %s, %d" % (sr(sRk), sr(sRk), (1 << sh) >> 1))
                    salu("s_ashr_i32 %s, %s, %d" % (sr(sRk), sr(sRk), sh))
                    salu("s_min_i32 %s, %s, %d" % (sr(sRk), sr(sRk), umax))
                    salu("s_max_i32 %s, %s, %d" % (sr(sRk), sr(sRk), -umax))
                    salu("s_add_i32 %s, %s, %d" % (sr(sRk), sr(sRk), center))
                elif table is not None:
                    salu("s_lshl_b32 %s, %s, 2" % (sr(sRk), sr(sRk)))
                    salu("s_lshr_b32 %s, 0x%x, %s" % (sr(sRk), table, sr(sRk)))
                    salu("s_and_b32 %s, %s, 7" % (sr(sRk), sr(sRk)))
                else:
                    salu("s_mul_i32 %s, %s, %d" % (sr(sRk), sr(sRk), mapk))
                    salu("s_lshr_b32 %s, %s, 4" % (sr(sRk), sr(sRk)))
                    if mapk == 3: salu("s_add_u32 %s, %s, 1" % (sr(sRk), sr(sRk)))
                if force_mode is not None: salu("s_mov_b32 %s, %d" % (sr(sRk), force_mode))
                valu("v_mov_b32 %s, %s" % (vr(regs['md']), sr(sRk)), wr=[regs['md']])
                name = "L_w%d%s" % (lab[0], suffix); lab[0] += 1
                salu("s_cmp_lg_u32 s3, 0")
                salu("s_cbranch_scc1 %s" % name)
                I("ds_write_b32 v31, %s offset:%d" % (vr(regs['md']), LDS_MODE), 'ds', rd=[31, regs['md']]) if False else \
                I("ds_write_b32 %s, %s offset:%d" % (vr(vZero), vr(regs['md']), LDS_MODE), 'ds', rd=[vZero, regs['md']])
                E.pos -= 1
                E.label(name, flush=False)
            if j == dly[1]:
                I("ds_read_b32 %s, %s offset:%d" % (vr(regs['md']), vr(vZero), LDS_MODE), 'ds', rd=[vZero], wr=[regs['md']])
            if j == dly[2]:
                E.raw("s_waitcnt lgkmcnt(0)")
                I("v_readfirstlane_b32 %s, %s" % (sr(sMode), vr(regs['md'])), 'rdlane', rd=[regs['md']], swr=[sMode])
                E.nop(1)

    E.mark('P0')
    salu("s_cmp_ge_u32 s2, 256")
    salu("s_cbranch_scc1 L_end")
    stamp(0)
    salu("s_load_dwordx8 s[4:11], s[0:1], 0")
    salu("s_load_dwordx4 s[12:15], s[0:1], 32")
    if fb: salu("s_load_dwordx2 s[76:77], s[0:1], 56")
    valu("v_lshrrev_b32 v5, 6, v0", rd=[0], wr=[5])
    valu("v_and_b32 v0, 63, v0", rd=[0], wr=[0])
    I("v_readfirstlane_b32 s3, v5", 'rdlane', rd=[5], swr=[3])
    valu("v_and_b32 v5, 15, v0", rd=[0], wr=[5])
    valu("v_lshrrev_b32 v6, 4, v0", rd=[0], wr=[6])
    valu("v_lshlrev_b32 v7, 4, v5", rd=[5], wr=[7])
    valu("v_lshl_add_u32 v1, v6, 11, v7", rd=[6, 7], wr=[1])
    if wgmix:
        salu("s_lshr_b32 %s, s2, %d" % (sr(sWG), wgmix))
        salu("s_and_b32 %s, %s, 7" % (sr(sWG), sr(sWG)))
        salu("s_xor_b32 %s, %s, s2" % (sr(sWG), sr(sWG)))
    else:
        salu("s_mov_b32 %s, s2" % sr(sWG))
    salu("s_lshl_b32 %s, %s, %d" % (sr(sBase), sr(sWG), 19 if hsplit else 20))
    if hsplit == 2:
        salu("s_lshl_b32 %s, %s, 1" % (sr(sHD), sr(sWG)))
        salu("s_sub_u32 %s, 511, %s" % (sr(sHD), sr(sHD)))
        salu("s_lshl_b32 %s, %s, 8" % (sr(sQ1), sr(sHD)))
        salu("s_lshl_b32 %s, %s, 19" % (sr(sHD), sr(sHD)))
    else:
        salu("s_mov_b32 %s, %d" % (sr(sQ1), 65536 if hsplit else 256))
    salu("s_lshl_b32 %s, s3, 14" % sr(sT), srd=[3])
    salu("s_add_u32 %s, %s, %s" % (sr(sBase), sr(sBase), sr(sT)))
    salu("s_lshl_b32 %s, s3, 7" % sr(sW128))
    salu("s_lshr_b32 %s, s3, %d" % (sr(sPW), pbit))
    salu("s_and_b32 %s, %s, 1" % (sr(sPW), sr(sPW)))
    salu("s_lshl_b32 %s, %s, 13" % (sr(sT), sr(sPW)))
    salu("s_add_u32 %s, %s, %s" % (sr(sBase), sr(sBase), sr(sT)))
    salu("s_xor_b32 %s, %s, 0x2000" % (sr(sBaseO), sr(sBase)))
    salu("s_mov_b32 s18, 0x10000000")
    salu("s_mov_b32 s19, 0x00020000")
    salu("s_mov_b32 s30, 0x20000")
    salu("s_mov_b32 s31, 0x00020000")
    salu("s_lshl_b32 %s, %s, %d" % (sr(sT2), sr(sWG), 8 if hsplit else 9))
    salu("s_add_u32 %s, %s, %s" % (sr(sEo), sr(sT2), sr(sQ1)))
    main_base(0); state['based'] = 0
    E.raw("s_waitcnt lgkmcnt(0)")
    salu("s_mov_b32 s16, s6")
    salu("s_mov_b32 s17, s7")
    salu("s_mov_b32 s28, s4")
    salu("s_mov_b32 s29, s5")
    issue_upto(0)
    for hh in range(2):
        E.load("buffer_load_dwordx4 %s, v7, %s, %s offen" % (vr(Q + 4 * hh, 4), sr(SRQ, 4), sr(sEo if hh else sT2)),
               tag=('q', hh), rd=[7], wr=rng(Q + 4 * hh, 4))
    issue_upto(look(0) - 1)
    salu("s_mov_b32 s48, s8"); salu("s_mov_b32 s49, s9"); salu("s_mov_b32 s50, 0x10000000"); salu("s_mov_b32 s51, 0x00020000")
    salu("s_mov_b32 s20, s10"); salu("s_mov_b32 s21, s11"); salu("s_mov_b32 s22, %s" % ("0" if nullE else "0x40000")); salu("s_mov_b32 s23, 0x00020000")
    salu("s_mov_b32 s24, s12"); salu("s_mov_b32 s25, s13"); salu("s_mov_b32 s26, %s" % ("0" if nullF else "0x40000")); salu("s_mov_b32 s27, 0x00020000")
    if warm and warmat is None: warm_load()
    if tlbw:
        valu("v_mov_b32 v31, 0", wr=[31])
        salu("s_lshl_b32 %s, %s, 20" % (sr(sT), sr(sWG)))
        salu("s_lshl_b32 %s, s3, 17" % sr(sEo))
        salu("s_add_u32 %s, %s, %s" % (sr(sT), sr(sT), sr(sEo)))
        E.load("buffer_load_dword %s, v31, %s, %s offen nt" % (vr(PD + 8), sr(SRM_V, 4), sr(sT)), tag=('w', 2), rd=[31], wr=[PD + 8])
        if tlbw > 1:
            salu("s_mov_b32 s76, s14"); salu("s_mov_b32 s77, s15"); salu("s_mov_b32 s78, 0x20000"); salu("s_mov_b32 s79, 0x00020000")
            E.load("buffer_load_dword %s, v31, s[76:79], %s offen nt" % (vr(PD + 9), sr(sT2)), tag=('w', 3), rd=[31], wr=[PD + 9])
    valu("v_and_b32 v29, 7, v5", rd=[5], wr=[29])
    valu("v_lshrrev_b32 v30, 3, v5", rd=[5], wr=[30])
    if emode == 'B':
        valu("v_lshlrev_b32 v2, 12, v29", rd=[29], wr=[2])
        valu("v_lshl_add_u32 v2, v30, 6, v2", rd=[30, 2], wr=[2])
    else:
        valu("v_lshlrev_b32 v2, 12, v5", rd=[5], wr=[2])
    valu("v_lshl_add_u32 v2, v6, 4, v2", rd=[6, 2], wr=[2])
    valu("v_lshlrev_b32 v3, 16, v6", rd=[6], wr=[3])
    valu("v_lshl_add_u32 v3, v30, 10, v3", rd=[30, 3], wr=[3])
    valu("v_lshl_add_u32 v3, v29, 4, v3", rd=[29, 3], wr=[3])
    salu("s_mov_b32 %s, 0x07060302" % sr(sPerm))
    salu("s_mov_b32 %s, 0xffff0000" % sr(sHi))
    c = (128 ** -0.5) * math.log2(math.e)
    salu("s_mov_b32 %s, 0x%08x" % (sr(sC), struct.unpack('<I', struct.pack('<f', c))[0]))
    salu("s_cmp_eq_u32 %s, 0" % sr(sPW))
    salu("s_mov_b32 s54, 0xcccccccc")
    salu("s_cselect_b32 s54, s54, 0x33333333")
    salu("s_mov_b32 s55, s54")
    salu("s_lshl_b32 %s, %s, 6" % (sr(sT), sr(sPW)))
    valu("v_xor_b32 v3, %s, v3" % sr(sT), rd=[3], wr=[3])
    salu("s_add_u32 %s, %s, %s" % (sr(sEa), sr(sW128), sr(sT)))
    salu("s_xor_b32 %s, %s, 64" % (sr(sEb), sr(sEa)))
    valu("v_and_b32 v4, 1, v5", rd=[5], wr=[4])
    valu("v_mul_u32_u24 v28, 16, v4", rd=[4], wr=[28])
    valu("v_sub_u32 v4, 0, v4", rd=[4], wr=[4])
    valu("v_and_b32 v4, 0xffff0000, v4", rd=[4], wr=[4])
    valu("v_mul_u32_u24 v29, 0x0202, v30", rd=[30], wr=[29])
    valu("v_sub_u32 v29, 0x0302, v29", rd=[29], wr=[29])
    valu("v_lshlrev_b32 v29, v28, v29", rd=[28, 29], wr=[29])
    valu("v_mov_b32 v30, 0x0c0c0000", wr=[30])
    valu("v_lshrrev_b32 v30, v28, v30", rd=[28, 30], wr=[30])
    valu("v_or_b32 v29, v29, v30", rd=[29, 30], wr=[29])
    valu("v_bfe_u32 v30, v5, 1, 2", rd=[5], wr=[30])
    valu("v_mov_b32 v31, 0x0c0c0c0c", wr=[31])
    for k in range(4):
        valu("v_cmp_eq_u32 vcc, %d, v30" % k, rd=[30], swr=['vcc'])
        valu("v_cndmask_b32 %s, v31, v29, vcc" % vr(SEL + k), rd=[31, 29], wr=[SEL + k], srd=['vcc'])
    if fb:
        salu("s_mov_b32 s78, 0x100000"); salu("s_mov_b32 s79, 0x00020000")
        if G == 16:
            salu("s_lshr_b32 %s, s2, 4" % sr(sT))
            valu("v_mov_b32 %s, %s" % (vr(vCnt), sr(sT)), wr=[vCnt])
        else:
            salu("s_and_b32 %s, s2, 7" % sr(sT))
            salu("s_lshr_b32 %s, s2, 3" % sr(sEo))
            valu("v_lshl_add_u32 %s, v5, 1, 1" % vr(vCnt), rd=[5], wr=[vCnt])
            valu("v_mul_u32_u24 %s, %s, %s" % (vr(vCnt), sr(sT), vr(vCnt)), rd=[vCnt], wr=[vCnt])
            valu("v_add_u32 %s, %s, %s" % (vr(vCnt), sr(sEo), vr(vCnt)), rd=[vCnt], wr=[vCnt])
            valu("v_and_b32 %s, 31, %s" % (vr(vCnt), vr(vCnt)), rd=[vCnt], wr=[vCnt])
            if G == 4:
                valu("v_mul_u32_u24 %s, 11, v5" % vr(vMd), rd=[5], wr=[vMd])
                valu("v_lshrrev_b32 %s, 5, %s" % (vr(vMd), vr(vMd)), rd=[vMd], wr=[vMd])
                valu("v_mul_u32_u24 %s, 3, %s" % (vr(vMd), vr(vMd)), rd=[vMd], wr=[vMd])
                valu("v_sub_u32 %s, v5, %s" % (vr(vMd), vr(vMd)), rd=[5, vMd], wr=[vMd])
                valu("v_lshrrev_b32 %s, %s, %s" % (vr(vMd), vr(vMd), sr(sT)), rd=[vMd], wr=[vMd])
                valu("v_and_b32 %s, 1, %s" % (vr(vMd), vr(vMd)), rd=[vMd], wr=[vMd])
                valu("v_lshl_add_u32 %s, %s, 1, %s" % (vr(vCnt), vr(vCnt), vr(vMd)), rd=[vCnt, vMd], wr=[vCnt])
            if G == 2:
                valu("v_mul_u32_u24 %s, 37, v5" % vr(vMd), rd=[5], wr=[vMd])
                valu("v_lshrrev_b32 %s, 8, %s" % (vr(vMd), vr(vMd)), rd=[vMd], wr=[vMd])
                valu("v_mul_u32_u24 %s, 7, %s" % (vr(vMd), vr(vMd)), rd=[vMd], wr=[vMd])
                valu("v_sub_u32 %s, v5, %s" % (vr(vMd), vr(vMd)), rd=[5, vMd], wr=[vMd])
                valu("v_add_u32 %s, 1, %s" % (vr(vMd), vr(vMd)), rd=[vMd], wr=[vMd])
                valu("v_xor_b32 %s, %s, %s" % (vr(vMd), sr(sT), vr(vMd)), rd=[vMd], wr=[vMd])
                valu("v_min_u32 %s, %s, %s" % (vr(vMd), sr(sT), vr(vMd)), rd=[vMd], wr=[vMd])
                valu("v_lshl_add_u32 %s, %s, 3, %s" % (vr(vCnt), vr(vCnt), vr(vMd)), rd=[vCnt, vMd], wr=[vCnt])
        valu("v_lshl_add_u32 %s, v5, %d, %s" % (vr(vCnt), 8 if G == 2 else 6, vr(vCnt)), rd=[5, vCnt], wr=[vCnt])
        valu("v_lshlrev_b32 %s, %d, %s" % (vr(vCnt), 7 if G == 2 else 8, vr(vCnt)), rd=[vCnt], wr=[vCnt])
        salu("s_cmp_eq_u32 s3, 0")
        salu("s_mov_b32 %s, 0x80000" % sr(sT))
        salu("s_cselect_b32 %s, %s, 0x7ff00000" % (sr(sT), sr(sT)))
        valu("v_add_u32 %s, %s, %s" % (vr(vCnt), sr(sT), vr(vCnt)), rd=[vCnt], wr=[vCnt])
        valu("v_mov_b32 %s, 1" % vr(vRet), wr=[vRet])
        valu("v_mov_b32 %s, 0" % vr(vZero), wr=[vZero])
        valu("v_mov_b32 %s, %d" % (vr(vMd), center), wr=[vMd])
        salu("s_mov_b32 %s, %d" % (sr(sMode), center))
        salu("s_mov_b32 s84, 0")
        if initat is None: init_load()
        I("ds_write_b32 %s, %s offset:%d" % (vr(vZero), vr(vMd), LDS_MODE), 'ds', rd=[vZero, vMd])
    E.vmwait([('q', 0), ('q', 1)])
    stamp(1)

    aux = {}
    if emode == 'B': ep = epos or [0, 3, 6, 9, 14, 17, 20, 23]
    else: ep = epos or [0, 0, 3, 3, 6, 6, 9, 9]
    for k in range(4):
        for n in range(8): aux.setdefault(k * 32 + ep[n], []).append(('e', k, n))
    fk = fposK or ([12, 26, 28, 30] if emode == 'B' else [14, 18, 22, 26])
    fpos = [k * 32 + j for k in range(4) for j in fk]
    fpos[-4:] = [96 + j for j in (1, 4, 12, 15)]
    fpos += [128 + bt * 16 + j for bt in range(4) for j in (fposV or (0, 4, 8, 11))]
    for n, pos in enumerate(fpos): aux.setdefault(pos, []).append(('f', n))

    def red(t, lvl):
        p = P + t
        if lvl == 0:
            dpp("v_add_f32_dpp %s, %s, %s row_ror:8 row_mask:0xf bank_mask:0x3" % (vr(p), vr(p), vr(p)), [p], rd=[p], wr=[p])
        elif lvl == 1:
            tt = T + (t & 1)
            dpp("v_add_f32_dpp %s, %s, %s row_ror:8 row_mask:0xf bank_mask:0xc" % (vr(p), vr(tt), vr(tt)), [tt], rd=[tt, p], wr=[p])
        elif lvl == 2:
            dpp("v_add_f32_dpp %s, %s, %s row_half_mirror row_mask:0xf bank_mask:0xf" % (vr(p), vr(p), vr(p)), [p], rd=[p], wr=[p])
        elif lvl == 3:
            dpp("v_add_f32_dpp %s, %s, %s quad_perm:[1,0,3,2] row_mask:0xf bank_mask:0xf" % (vr(p), vr(p), vr(p)), [p], rd=[p], wr=[p])
        elif lvl == 4:
            dpp("v_add_f32_dpp %s, %s, %s quad_perm:[2,3,0,1] row_mask:0xf bank_mask:0xf" % (vr(p), vr(p), vr(p)), [p], rd=[p], wr=[p])
        elif lvl == 5:
            valu("v_and_b32 %s, %s, %s" % (vr(30 + (t & 1)), vr(p), vr(vMB)), rd=[p, vMB], wr=[30 + (t & 1)])
            valu("v_sub_f32 %s, %s, %s" % (vr(p), vr(p), vr(30 + (t & 1))), rd=[p, 30 + (t & 1)], wr=[p])

    for bt in range(8):
        done = set(); ready = {}
        for j in range(16):
            m = bt * 16 + j
            ph, _, hh, t = decode(m)
            step_wait_issue(m)
            for a in aux.get(m, []):
                if a[0] == 'e': e_load(a[1], a[2])
                else: f_load(a[1])
            fb_hooks(m)
            r = slot(m)
            dst = (P + t) if hh == 0 else (T + (t & 1))
            for k in range(4):
                c_ = "0" if k == 0 else vr(dst)
                I("v_dot2_f32_bf16 %s, %s, %s, %s" % (vr(dst), vr(r + k), vr(Q + 4 * hh + k), c_), 'dot',
                  rd=[r + k, Q + 4 * hh + k], wr=[dst], creads=([dst] if k else []))
            todo = []
            for tt in range(8):
                for lvl in range(6):
                    if (tt, lvl) in done: continue
                    if lvl == 0: dep = ready.get((tt, 'h0'))
                    elif lvl == 1:
                        d1, d2 = ready.get((tt, 'h1')), ready.get((tt, 0))
                        dep = None if d1 is None or d2 is None else max(d1, d2)
                    else: dep = ready.get((tt, lvl - 1))
                    if dep is not None and dep < j: todo.append((tt, lvl))
                    break
            for (tt, lvl) in todo:
                red(tt, lvl); done.add((tt, lvl)); ready[(tt, lvl)] = j
            ready[(t, 'h%d' % hh)] = j
        while len(done) < 48:
            todo = []
            for tt in range(8):
                for lvl in range(6):
                    if (tt, lvl) in done: continue
                    todo.append((tt, lvl)); break
            for (tt, lvl) in todo:
                red(tt, lvl); done.add((tt, lvl))
        kp = bt >> 1
        if emode == 'B':
            dstb = BE if (bt & 1) == 0 else P
            for k in range(4):
                valu("v_perm_b32 %s, %s, %s, %s" % (vr(dstb + k), vr(P + 2 * k + 1), vr(P + 2 * k), sr(sPerm)),
                     rd=[P + 2 * k, P + 2 * k + 1], wr=[dstb + k])
            if bt & 1:
                for k in range(4):
                    valu("v_cndmask_b32 %s, %s, %s, s[54:55]" % (vr(BE + k), vr(BE + k), vr(P + k)), rd=[BE + k, P + k], wr=[BE + k])
                E.vmwait([('e', kp, n) for n in range(8)])
                for n in range(8):
                    c_ = "0" if kp == 0 else vr(S + 4 * n, 4)
                    I("v_mfma_f32_16x16x32_bf16 %s, %s, %s, %s" % (vr(S + 4 * n, 4), vr(ES + 4 * n, 4), vr(BE, 4), c_), 'mfma',
                      rd=rng(ES + 4 * n, 4) + rng(BE, 4), wr=rng(S + 4 * n, 4), creads=(rng(S + 4 * n, 4) if kp else []))
        else:
            for k in range(4):
                valu("v_perm_b32 %s, %s, %s, %s" % (vr(P + k), vr(P + 2 * k + 1), vr(P + 2 * k), sr(sPerm)),
                     rd=[P + 2 * k, P + 2 * k + 1], wr=[P + k])
            E.vmwait([('e', kp, 2 * rt + (bt & 1)) for rt in range(4)])
            for rt in range(4):
                c_ = "0" if bt == 0 else vr(S + 4 * rt, 4)
                es = ES + 4 * (2 * rt + (bt & 1))
                I("v_mfma_f32_16x16x32_bf16 %s, %s, %s, %s" % (vr(S + 4 * rt, 4), vr(es, 4), vr(P, 4), c_), 'mfma',
                  rd=rng(es, 4) + rng(P, 4), wr=rng(S + 4 * rt, 4), creads=(rng(S + 4 * rt, 4) if bt else []))
    stamp(2)
    valu("v_bfe_u32 v5, v0, 3, 1", rd=[0], wr=[5])
    valu("v_lshrrev_b32 v6, 4, v0", rd=[0], wr=[6])
    valu("v_lshlrev_b32 v7, 8, v5", rd=[5], wr=[7])
    if emode == 'B':
        nS, nPart = 32, 16
        valu("v_lshrrev_b32 v28, 1, v6", rd=[6], wr=[28])
        valu("v_lshl_add_u32 v7, v28, 9, v7", rd=[28, 7], wr=[7])
        valu("v_and_b32 v28, 1, v6", rd=[6], wr=[28])
        valu("v_lshl_add_u32 v7, v28, 4, v7", rd=[28, 7], wr=[7])
        salu("s_lshl_b32 %s, s3, 10" % sr(sT))
    else:
        nS, nPart = 16, 8
        valu("v_lshl_add_u32 v7, v6, 4, v7", rd=[6, 7], wr=[7])
        salu("s_lshl_b32 %s, s3, 9" % sr(sT))
    valu("v_add_u32 v7, %s, v7" % sr(sT), rd=[7], wr=[7])
    for r in range(nS):
        dpp("v_add_f32_dpp %s, %s, %s quad_perm:[1,0,3,2] row_mask:0xf bank_mask:0xf" % (vr(S + r), vr(S + r), vr(S + r)),
            [S + r], rd=[S + r], wr=[S + r])
    salu("s_mov_b32 exec_lo, 0x01010101")
    salu("s_mov_b32 exec_hi, %s" % ("0x04040404" if emode == 'B' else "0x01010101"))
    for n in range(nS // 4):
        I("ds_write_b128 v7, %s offset:%d" % (vr(S + 4 * n, 4), LDS_PART + n * (32 if emode == 'B' else 64)), 'ds', rd=[7] + rng(S + 4 * n, 4))
    salu("s_mov_b64 exec, -1")
    valu("v_lshlrev_b32 v7, 2, v0", rd=[0], wr=[7])
    E.raw("s_waitcnt lgkmcnt(0)")
    E.raw("s_barrier")
    for w in range(nPart):
        I("ds_read2st64_b32 %s, v7 offset0:%d offset1:%d" % (vr(S + 2 * w, 2), 2 * w, 2 * w + 1), 'ds', rd=[7], wr=rng(S + 2 * w, 2))
    salu("s_lshl_b32 %s, s3, 8" % sr(sT))
    valu("v_add_u32 v7, %s, v7" % sr(sT), rd=[7], wr=[7])
    valu("v_lshlrev_b32 v6, 6, v6", rd=[6], wr=[6])
    valu("v_add_u32 v6, %s, v6" % sr(sT), rd=[6], wr=[6])
    E.raw("s_waitcnt lgkmcnt(0)")
    step = 1
    while step < nPart:
        for w in range(0, nPart, 2 * step):
            a, b = S + 2 * w, S + 2 * (w + step)
            valu("v_pk_add_f32 %s, %s, %s" % (vr(a, 2), vr(a, 2), vr(b, 2)), rd=rng(a, 2) + rng(b, 2), wr=rng(a, 2))
        step *= 2
    X0, X1, M0, M1 = S, S + 1, S + 2, S + 3
    def wave_reduce(op, src0, src1, d0, d1):
        ctl = ["quad_perm:[1,0,3,2] row_mask:0xf bank_mask:0xf", "quad_perm:[2,3,0,1] row_mask:0xf bank_mask:0xf",
               "row_half_mirror row_mask:0xf bank_mask:0xf", "row_mirror row_mask:0xf bank_mask:0xf",
               "row_bcast:15 row_mask:0xa bank_mask:0xf", "row_bcast:31 row_mask:0xc bank_mask:0xf"]
        for n, c_ in enumerate(ctl):
            for (s_, d_) in ((src0, d0), (src1, d1)):
                s = s_ if n == 0 else d_
                dpp("%s_dpp %s, %s, %s %s" % (op, vr(d_), vr(s), vr(s), c_), [s], rd=[s, d_], wr=[d_])
        I("v_readlane_b32 %s, %s, 63" % (sr(sR0), vr(d0)), 'rdlane', rd=[d0], swr=[sR0])
        I("v_readlane_b32 %s, %s, 63" % (sr(sR1), vr(d1)), 'rdlane', rd=[d1], swr=[sR1])
    wave_reduce("v_max_f32", X0, X1, M0, M1)
    valu("v_subrev_f32 %s, %s, %s" % (vr(X0), sr(sR0), vr(X0)), rd=[X0], wr=[X0], srd=[sR0])
    valu("v_subrev_f32 %s, %s, %s" % (vr(X1), sr(sR1), vr(X1)), rd=[X1], wr=[X1], srd=[sR1])
    valu("v_mul_f32 %s, %s, %s" % (vr(X0), sr(sC), vr(X0)), rd=[X0], wr=[X0])
    valu("v_mul_f32 %s, %s, %s" % (vr(X1), sr(sC), vr(X1)), rd=[X1], wr=[X1])
    I("v_exp_f32 %s, %s" % (vr(X0), vr(X0)), 'trans', rd=[X0], wr=[X0])
    I("v_exp_f32 %s, %s" % (vr(X1), vr(X1)), 'trans', rd=[X1], wr=[X1])
    wave_reduce("v_add_f32", X0, X1, M0, M1)
    I("v_rcp_f32 %s, %s" % (vr(M0), sr(sR0)), 'trans', wr=[M0], srd=[sR0])
    I("v_rcp_f32 %s, %s" % (vr(M1), sr(sR1)), 'trans', wr=[M1], srd=[sR1])
    valu("v_mul_f32 %s, %s, %s" % (vr(X0), vr(X0), vr(M0)), rd=[X0, M0], wr=[X0])
    valu("v_mul_f32 %s, %s, %s" % (vr(X1), vr(X1), vr(M1)), rd=[X1, M1], wr=[X1])
    valu("v_cvt_pk_bf16_f32 %s, %s, %s" % (vr(M0), vr(X1), vr(X0)), rd=[X0, X1], wr=[M0])
    I("ds_write_b32 v7, %s offset:%d" % (vr(M0), LDS_PD), 'ds', rd=[7, M0])
    E.raw("s_waitcnt lgkmcnt(0)")
    for k in range(4):
        I("ds_read_b128 %s, v6 offset:%d" % (vr(PD + 4 * k, 4), LDS_PD + 16 * k), 'ds', rd=[6], wr=rng(PD + 4 * k, 4))
    def build_b(src, buf):
        for k in range(4):
            valu("v_perm_b32 %s, %s, %s, %s" % (vr(buf + k), vr(src), vr(src), vr(SEL + k)), rd=[src, SEL + k], wr=[buf + k])
    def f_stage(g):
        DA = ES; bufs = [ES + 4, ES + 8, ES + 12, ES + 16]
        E.vmwait([('f', 16 * g + u) for u in range(16)])
        build_b(PD, bufs[0])
        d = DA
        for u in range(16):
            if u < 15: build_b(PD + u + 1, bufs[(u + 1) & 3])
            b = bufs[u & 3]
            c_ = "0" if u == 0 else vr(d, 4)
            fs = FS + 4 * u
            I("v_mfma_f32_16x16x32_bf16 %s, %s, %s, %s" % (vr(d, 4), vr(fs, 4), vr(b, 4), c_), 'mfma',
              rd=rng(fs, 4) + rng(b, 4), wr=rng(d, 4), creads=(rng(d, 4) if u else []))
        I("v_permlane32_swap_b32 %s, %s" % (vr(d), vr(d + 2)), 'perml', rd=[d, d + 2], wr=[d, d + 2])
        I("v_permlane32_swap_b32 %s, %s" % (vr(d + 1), vr(d + 3)), 'perml', rd=[d + 1, d + 3], wr=[d + 1, d + 3])
        I("v_permlane16_swap_b32 %s, %s" % (vr(d), vr(d + 1)), 'perml', rd=[d, d + 1], wr=[d, d + 1])
        I("v_permlane16_swap_b32 %s, %s" % (vr(d + 2), vr(d + 3)), 'perml', rd=[d + 2, d + 3], wr=[d + 2, d + 3])
        prs = [(W + 4 * g + a, DA + a) for a in range(4)]
        for (w_, d_) in prs:
            valu("v_and_b32 %s, %s, %s" % (vr(w_), sr(sHi), vr(d_)), rd=[d_], wr=[w_])
        for (w_, d_) in prs:
            valu("v_sub_f32 %s, %s, %s" % (vr(w_), vr(d_), vr(w_)), rd=[d_, w_], wr=[w_])
        for (w_, d_) in prs:
            valu("v_perm_b32 %s, %s, %s, %s" % (vr(w_), vr(d_), vr(w_), sr(sPerm)), rd=[d_, w_], wr=[w_])
    E.raw("s_waitcnt lgkmcnt(0)")
    if fb:
        for nm, nr in (('cnt', 240), ('init', 241), ('ret', 242)):
            valu("v_mov_b32 %s, %s" % (vr(nr), vr(regs[nm])), rd=[regs[nm]], wr=[nr]); regs[nm] = nr
        regs['md'] = 243
        valu("v_mov_b32 v244, 0", wr=[244])
        vZero = 244
    f_stage(0)
    stamp(3)
    def prep(m):
        ph, a, hh, t = decode(m)
        xr = T + (m & 1)
        dpp("v_mov_b32_dpp %s, %s row_newbcast:%d row_mask:0xf bank_mask:0xf" % (vr(xr), vr(W + a), t + 8 * hh), [W + a], wr=[xr])
        build_b(xr, BB + 4 * (m & 3))
    prep(128)
    first = [True, True]
    for m in range(128, 256):
        ph, a, hh, t = decode(m)
        if m == 191:
            issue_upto(m + look(m) + 1 + (1 if fb else 0))
            f_stage(1)
        if m + 1 < 256: prep(m + 1)
        step_wait_issue(m)
        for a_ in aux.get(m, []): f_load(a_[1])
        fb_hooks(m)
        r = slot(m)
        b = BB + 4 * (m & 3)
        c_ = "0" if first[hh] else vr(O + 4 * hh, 4)
        I("v_mfma_f32_16x16x32_bf16 %s, %s, %s, %s" % (vr(O + 4 * hh, 4), vr(r, 4), vr(b, 4), c_), 'mfma',
          rd=rng(r, 4) + rng(b, 4), wr=rng(O + 4 * hh, 4), creads=([] if first[hh] else rng(O + 4 * hh, 4)))
        first[hh] = False
    stamp(4)
    R = 32
    valu("v_and_b32 v6, 7, v0", rd=[0], wr=[6])
    valu("v_lshlrev_b32 v6, 2, v6", rd=[6], wr=[6])
    valu("v_lshl_add_u32 v6, v5, 9, v6", rd=[5, 6], wr=[6])
    valu("v_lshrrev_b32 v7, 4, v0", rd=[0], wr=[7])
    valu("v_lshl_add_u32 v6, v7, 7, v6", rd=[7, 6], wr=[6])
    salu("s_lshl_b32 %s, s3, 10" % sr(sT))
    valu("v_add_u32 v6, %s, v6" % sr(sT), rd=[6], wr=[6])
    for t in range(4):
        dpp("v_add_f32_dpp %s, %s, %s row_ror:8 row_mask:0xf bank_mask:0x3" % (vr(R + t), vr(O + t), vr(O + t)), [O + t], rd=[O + t, R + t], wr=[R + t])
        dpp("v_add_f32_dpp %s, %s, %s row_ror:8 row_mask:0xf bank_mask:0xc" % (vr(R + t), vr(O + 4 + t), vr(O + 4 + t)), [O + 4 + t], rd=[O + 4 + t, R + t], wr=[R + t])
    for t in range(4):
        I("ds_write_b32 v6, %s offset:%d" % (vr(R + t), LDS_OP + 32 * t), 'ds', rd=[6, R + t])
    valu("v_lshlrev_b32 v6, 4, v0", rd=[0], wr=[6])
    valu("v_and_b32 v7, 31, v0", rd=[0], wr=[7])
    valu("v_lshlrev_b32 v7, 3, v7", rd=[7], wr=[7])
    valu("v_lshrrev_b32 v28, 5, v0", rd=[0], wr=[28])
    valu("v_mul_lo_u32 v28, %s, v28" % sr(sQ1), rd=[28], wr=[28])
    valu("v_add_u32 v7, v7, v28", rd=[7, 28], wr=[7])
    salu("s_mov_b32 s28, s14")
    salu("s_mov_b32 s29, s15")
    E.raw("s_waitcnt lgkmcnt(0)")
    E.raw("s_barrier")
    if stamps:
        stamp(5)
        salu("s_load_dwordx2 s[68:69], s[0:1], 56")
        salu("s_getreg_b32 s54, hwreg(HW_REG_XCC_ID)")
        salu("s_getreg_b32 s55, hwreg(HW_REG_HW_ID)")
        E.raw("s_waitcnt lgkmcnt(0)")
        salu("s_mov_b32 s70, 0x100000")
        salu("s_mov_b32 s71, 0x00020000")
        for n in range(6):
            valu("v_mov_b32 v%d, s%d" % (40 + n, STB + 2 * n), wr=[40 + n])
        valu("v_mov_b32 v46, s54", wr=[46])
        valu("v_mov_b32 v47, s55", wr=[47])
        salu("s_lshl_b32 s54, s2, 9")
        salu("s_lshl_b32 s55, s3, 5")
        salu("s_add_u32 s54, s54, s55")
        valu("v_mov_b32 v39, 0", wr=[39])
        I("buffer_store_dwordx4 v[40:43], v39, s[68:71], s54 offen", 'vmem', rd=[39])
        I("buffer_store_dwordx4 v[44:47], v39, s[68:71], s54 offen offset:16", 'vmem', rd=[39])
        E.raw("s_waitcnt vmcnt(0)")
    salu("s_cmp_lg_u32 s3, 0")
    salu("s_cbranch_scc1 L_end")
    if dbgst:
        stamp(5)
        salu("s_load_dwordx2 s[68:69], s[0:1], 48")
        salu("s_getreg_b32 s54, hwreg(HW_REG_XCC_ID)")
        E.raw("s_waitcnt lgkmcnt(0)")
        salu("s_mov_b32 s70, 0x100")
        salu("s_mov_b32 s71, 0x00020000")
        salu("s_sub_u32 s54, s2, 128")
        salu("s_lshl_b32 s54, s54, 3")
        salu("s_min_u32 s54, s54, 0x1000")
        salu("s_sub_u32 s55, s%d, s%d" % (STB + 6, STB))
        salu("s_lshl_b32 s55, s55, 16")
        salu("s_and_b32 s%d, s%d, 0xffff" % (STB, STB))
        salu("s_or_b32 s55, s55, s%d" % STB)
        valu("v_mov_b32 v100, s55", wr=[100])
        valu("v_mov_b32 v101, s%d" % (STB + 10), wr=[101])
        valu("v_mov_b32 v102, s54", wr=[102])
        salu("s_mov_b32 s70, 64")
        salu("s_mov_b64 exec, 1")
        I("buffer_store_dwordx2 v[100:101], v102, s[68:71], 0 offen", "vmem", rd=[102])
        salu("s_mov_b64 exec, -1")
    for w in range(8):
        I("ds_read_b128 %s, v6 offset:%d" % (vr(32 + 4 * w, 4), LDS_OP + 1024 * w), 'ds', rd=[6], wr=rng(32 + 4 * w, 4))
    E.raw("s_waitcnt lgkmcnt(0)")
    step = 1
    while step < 8:
        for w in range(0, 8, 2 * step):
            for hf in range(2):
                a, b = 32 + 4 * w + 2 * hf, 32 + 4 * (w + step) + 2 * hf
                valu("v_pk_add_f32 %s, %s, %s" % (vr(a, 2), vr(a, 2), vr(b, 2)), rd=rng(a, 2) + rng(b, 2), wr=rng(a, 2))
        step *= 2
    valu("v_cvt_pk_bf16_f32 v20, v32, v33", rd=[32, 33], wr=[20])
    valu("v_cvt_pk_bf16_f32 v21, v34, v35", rd=[34, 35], wr=[21])
    I("buffer_store_dwordx2 v[20:21], v7, %s, %s offen" % (sr(SRQ, 4), sr(sT2)), 'vmem', rd=[20, 21, 7])
    E.label("L_end", flush=False)
    E.raw("s_endpgm")
    E.mark('END')
    E.resolve([('P0', 'END', {})])
    if body_only:
        return E.text().replace("L_end", "L_end" + suffix)
    return wrap(path, E.text())

def gen_dual(path, even, odd, **kw):
    a = gen(None, body_only=True, suffix="_a", **dict(kw, **even))
    b = gen(None, body_only=True, suffix="_b", **dict(kw, **odd))
    pre = "    s_getreg_b32 s3, hwreg(HW_REG_XCC_ID)\n    s_bitcmp1_b32 s3, 0\n    s_cbranch_scc1 L_odd\n"
    wrap(path, pre + a + ".p2align 6\nL_odd:\n" + b)

def wrap(path, text):
    out = HEADER.replace("with a 32-deep register ring per wave", "with a bounded number of loads in flight per wave")
    out += "; @launch grid=(256,1,1) block=(512,1,1) lds=20480\n"
    out += '.amdgcn_target "amdgcn-amd-amdhsa--gfx950"\n.text\n.globl %s\n.p2align 8\n.type %s,@function\n%s:\n' % (KN, KN, KN)
    out += text
    out += """.section .rodata,"a"
.p2align 6
.amdhsa_kernel %s
  .amdhsa_next_free_vgpr 256
  .amdhsa_next_free_sgpr 88
  .amdhsa_accum_offset 256
  .amdhsa_group_segment_fixed_size 0
  .amdhsa_kernarg_size 64
  .amdhsa_user_sgpr_count 2
  .amdhsa_user_sgpr_kernarg_segment_ptr 1
  .amdhsa_system_sgpr_workgroup_id_x 1
.end_amdhsa_kernel
""" % KN
    open(path, "w").write(out)
```

```python
from gen4 import gen
B = "bench/"
import os, glob, sys
for f in glob.glob(B + "k6_*.s"): os.remove(f)
V = dict(
  g4b=dict(),
  i5=dict(initat=5),
  i5w2=dict(initat=5, warmat=2),
  i7w4=dict(initat=7, warmat=4, epos=[8, 10, 12, 14, 17, 20, 23, 25]),
  i5s6=dict(initat=5, Lstart=6),
  i5nw=dict(initat=5, warm=0),
)
for k, v in V.items():
    gen(B + "k6_%s.s" % k, wgmix=5, stamps=True, satom=True, G=4, table=0x3221, **v)
```

```python
import sys
KN = "standalone__low_rank_proj_linformer__sampling_kernel"

def header(A, nwg, nw, lds):
    A("; @launch grid=(%d,1,1) block=(%d,1,1) lds=%d" % (nwg, nw * 64, lds))
    A('.amdgcn_target "amdgcn-amd-amdhsa--gfx950"')
    A(".text")
    A(".globl %s" % KN)
    A(".p2align 8")
    A(".type %s,@function" % KN)
    A("%s:" % KN)

def footer(A, nv):
    A('.section .rodata,"a"')
    A(".p2align 6")
    A(".amdhsa_kernel %s" % KN)
    A("  .amdhsa_next_free_vgpr %d" % nv)
    A("  .amdhsa_next_free_sgpr 32")
    A("  .amdhsa_accum_offset %d" % min(256, (nv + 3) // 4 * 4))
    A("  .amdhsa_group_segment_fixed_size 0")
    A("  .amdhsa_kernarg_size 64")
    A("  .amdhsa_user_sgpr_count 2")
    A("  .amdhsa_user_sgpr_kernarg_segment_ptr 1")
    A("  .amdhsa_system_sgpr_workgroup_id_x 1")
    A(".end_amdhsa_kernel")

def gen_empty(path):
    L = []; A = L.append
    header(A, 256, 16, 0)
    A("  s_endpgm")
    footer(A, 128)
    open(path, "w").write("\n".join(L) + "\n")

def gen(path, nwg=256, nw=16, depth=16, flags="nt", bs=8192, hh_par=2, rot=0, lane="contig", vgprs=128, lds=0, region=None, kv_inter=False):
    R = (256 << 20) // nwg
    sub = R // hh_par
    NB = sub // bs
    lpb = bs // 1024
    M = R // nw // 1024
    L = []; A = L.append
    header(A, nwg, nw, lds)
    A("  s_cmp_ge_u32 s2, %d" % nwg)
    A("  s_cbranch_scc1 L_end")
    A("  s_load_dwordx4 s[4:7], s[0:1], 8")
    A("  v_lshrrev_b32 v1, 6, v0")
    A("  v_and_b32 v2, 63, v0")
    A("  s_nop 0")
    A("  v_readfirstlane_b32 s3, v1")
    if lane == "contig":
        A("  v_lshlrev_b32 v3, 4, v2")
        tstep = 1024
    else:
        A("  v_and_b32 v3, 15, v2")
        A("  v_lshlrev_b32 v3, 4, v3")
        A("  v_lshrrev_b32 v4, 4, v2")
        A("  v_mul_u32_u24 v4, %d, v4" % (lpb * 256))
        A("  v_add_u32 v3, v3, v4")
        tstep = 256
    A("  s_waitcnt lgkmcnt(0)")
    A("  s_mov_b32 s8, s4")
    A("  s_mov_b32 s9, s5")
    A("  s_mov_b32 s10, 0x10000000")
    A("  s_mov_b32 s11, 0x00020000")
    A("  s_mul_i32 s12, s2, %d" % R)
    A("  s_mul_i32 s13, s2, %d" % rot)
    A("  s_add_u32 s13, s13, s3")
    assert depth % lpb == 0 or lpb % depth == 0
    seq = []
    rounds = NB // nw
    for r in range(rounds):
        for hh in range(hh_par):
            for t in range(lpb):
                seq.append((r, hh, t))
    assert len(seq) == M
    per_round = hh_par * lpb
    U = max(depth, per_round)
    assert U % depth == 0 and U % per_round == 0 and M % U == 0
    rounds_per_it = U // per_round
    nit = M // U
    A("  s_mov_b32 s14, 0")
    A("  s_mov_b32 s15, s13")
    A("L_loop:")
    for j in range(U):
        r, hh, t = seq[j]
        if t == 0:
            A("  s_add_u32 s17, s15, %d" % (r * nw))
            A("  s_and_b32 s17, s17, %d" % (NB - 1))
            A("  s_mul_i32 s17, s17, %d" % bs)
            A("  s_add_u32 s17, s17, s12")
        A("  s_add_u32 s16, s17, %d" % (hh * sub + t * tstep))
        A("  s_waitcnt vmcnt(%d)" % (depth - 1))
        jj = j % depth
        A("  buffer_load_dwordx4 v[%d:%d], v3, s[8:11], s16 offen %s" % (8 + 4 * jj, 11 + 4 * jj, flags))
    A("  s_add_u32 s15, s15, %d" % (rounds_per_it * nw))
    A("  s_add_u32 s14, s14, 1")
    A("  s_cmp_eq_u32 s14, %d" % nit)
    A("  s_cbranch_scc0 L_skip")
    A("  s_mov_b32 s8, s6")
    A("  s_mov_b32 s9, s7")
    A("  s_mov_b32 s15, s13")
    A("L_skip:")
    A("  s_cmp_lt_u32 s14, %d" % (2 * nit))
    A("  s_cbranch_scc1 L_loop")
    A("  s_waitcnt vmcnt(0)")
    A("L_end:")
    A("  s_endpgm")
    footer(A, vgprs)
    open(path, "w").write("\n".join(L) + "\n")

if __name__ == "__main__":
    gen_empty("p_empty.s")
    gen("p_b8k_h2.s", bs=8192, hh_par=2)
    gen("p_b8k_h1.s", bs=8192, hh_par=1)
    gen("p_b4k_h2.s", bs=4096, hh_par=2)
    gen("p_b4k_h1.s", bs=4096, hh_par=1)
    gen("p_b16k_h2.s", bs=16384, hh_par=2)
    gen("p_b16k_h1.s", bs=16384, hh_par=1)
    gen("p_b2k_h2.s", bs=2048, hh_par=2)
    gen("p_b8k_h2_r5.s", bs=8192, hh_par=2, rot=5)
    gen("p_b8k_h2_r16.s", bs=8192, hh_par=2, rot=16)
    gen("p_b8k_h1_r5.s", bs=8192, hh_par=1, rot=5)
    gen("p_b4k_h2_r7.s", bs=4096, hh_par=2, rot=7)
    gen("p_b1k_h1_r37.s", bs=1024, hh_par=1, rot=37)
    gen("p_b8k_h2_d8.s", bs=8192, hh_par=2, depth=8)
    gen("p_b8k_h2_d4.s", bs=8192, hh_par=2, depth=4)
```

```python
from gen_stream2 import header, footer, KN
def gen(path, wait=3):
    L = []; A = L.append
    header(A, 256, 8, 0)
    A("  s_cmp_ge_u32 s2, 256")
    A("  s_cbranch_scc1 L_end")
    A("  s_memrealtime s[20:21]")
    A("  s_load_dwordx4 s[4:7], s[0:1], 8")
    A("  s_load_dwordx2 s[24:25], s[0:1], 56")
    A("  s_load_dwordx2 s[12:13], s[0:1], 48")
    A("  v_lshrrev_b32 v1, 6, v0")
    A("  v_and_b32 v2, 63, v0")
    A("  s_nop 0")
    A("  v_readfirstlane_b32 s3, v1")
    A("  v_lshlrev_b32 v3, 4, v2")
    A("  s_waitcnt lgkmcnt(0)")
    A("  s_load_dwordx4 s[16:19], s[12:13], 0")
    A("  s_getreg_b32 s30, hwreg(HW_REG_XCC_ID)")
    A("  s_lshr_b32 s31, s2, 5"); A("  s_and_b32 s31, s31, 7"); A("  s_xor_b32 s31, s31, s2")
    A("  s_cmp_lt_u32 s31, 128")
    A("  s_cselect_b32 s8, s4, s6"); A("  s_cselect_b32 s9, s5, s7")
    A("  s_mov_b32 s10, 0x10000000"); A("  s_mov_b32 s11, 0x00020000")
    A("  s_mov_b32 s26, 0x100000"); A("  s_mov_b32 s27, 0x00020000")
    A("  s_and_b32 s31, s31, 127"); A("  s_lshl_b32 s31, s31, 21")
    A("  s_waitcnt lgkmcnt(0)")
    A("  s_and_b32 s30, s30, s18"); A("  s_bcnt1_i32_b32 s30, s30"); A("  s_xor_b32 s30, s30, s19"); A("  s_and_b32 s30, s30, 1")
    A("  s_lshl_b32 s32, 1, s16"); A("  s_sub_u32 s33, s32, 1")
    A("  s_mov_b32 s14, 0")
    A("L_loop:")
    for r in range(4):
        A("  s_lshl_b32 s15, s14, 5")
        A("  s_add_u32 s15, s15, %d" % (r * 8))
        A("  s_add_u32 s15, s15, s3")
        A("  s_lshl_b32 s15, s15, 12")
        A("  s_and_b32 s34, s15, s33")
        A("  s_andn2_b32 s35, s15, s33")
        A("  s_lshl_b32 s35, s35, 1")
        A("  s_or_b32 s15, s34, s35")
        A("  s_add_u32 s15, s15, s31")
        A("  s_and_b32 s34, s15, s17"); A("  s_bcnt1_i32_b32 s34, s34"); A("  s_xor_b32 s34, s34, s30"); A("  s_and_b32 s34, s34, 1")
        A("  s_lshl_b32 s34, s34, s16")
        A("  s_or_b32 s15, s15, s34")
        for t in range(4):
            j = r * 4 + t
            A("  s_waitcnt vmcnt(%d)" % (wait - 1))
            A("  buffer_load_dwordx4 v[%d:%d], v3, s[8:11], s15 offen offset:%d nt" % (8 + 4 * j, 11 + 4 * j, t * 1024))
    A("  s_add_u32 s14, s14, 1")
    A("  s_cmp_lt_u32 s14, 8")
    A("  s_cbranch_scc1 L_loop")
    A("  s_waitcnt vmcnt(0)")
    A("  s_memrealtime s[22:23]")
    A("  s_getreg_b32 s19, hwreg(HW_REG_XCC_ID)")
    A("  s_waitcnt lgkmcnt(0)")
    A("  v_mov_b32 v8, s20"); A("  v_mov_b32 v9, s22"); A("  v_mov_b32 v10, s19"); A("  v_mov_b32 v11, 0")
    A("  s_lshl_b32 s28, s2, 9"); A("  s_lshl_b32 s29, s3, 5"); A("  s_add_u32 s28, s28, s29")
    A("  buffer_store_dword v8, v11, s[24:27], s28 offen")
    A("  buffer_store_dword v9, v11, s[24:27], s28 offen offset:20")
    A("  buffer_store_dword v10, v11, s[24:27], s28 offen offset:24")
    A("L_end:")
    A("  s_endpgm")
    L2 = []
    footer(L2.append, 256)
    L += [x.replace("next_free_sgpr 32", "next_free_sgpr 48") for x in L2]
    open(path, "w").write("\n".join(L) + "\n")
gen("n_d3.s", 3)
gen("n_d8.s", 8)
```

```python
import sys, struct, math
from asmlib import *
from gen import HEADER, KN

def gen(path, L=3, Lstart=None, Lmid=10, midramp=4, LK=None, LV1=None, LV2=None, ntflag="nt", stamps=False,
        nullE=False, nullF=False, wgmix=0, warm=1, emode='B', tailboost=0, epos=None, fposK=None, fposV=None, pbit=2, hsplit=0, dbgst=False, endn=0, Lend=6, body_only=False, suffix='', tlbw=0, fb=1, ck_every=1, dyn=((1, 4, 0), (3, 3, 1)), mapk=5, dly=(5, 8, 9), force_mode=None, counted=False, noatom=False, satom=False, G=16, table=None, dynper=4, pi=None, cks=None, center=2, initat=None, warmat=None, kx=None, gm2=False, table_end=None, tend=12):
    E = Emitter()
    I = E.ins
    vMain, vE_, vF, vMB = 1, 2, 3, 4
    SEL = 8
    Q = 12; O = 12
    P = 20; W = 20
    T = 28
    PD = 32
    BB = 48
    BE = 48
    RING = 64
    FS = 128
    ES = 192
    S = 224
    SRM_K, SRM_V, SRE, SRF, SRQ = 16, 48, 20, 24, 28
    sBase, sEo, sT = 32, 37, 38
    sBaseO, sPW, sEa, sEb = 33, 36, 43, 72
    sHD, sQ1 = 73, 74
    sM = [[34, 35], [52, 53]]
    sPerm, sHi, sC = 40, 41, 42
    sR0, sR1 = 44, 45
    sW128 = 46
    sT2 = 47
    sWG = 39
    sHF = 54
    LDS_PART, LDS_PD, LDS_OP = 0, 8192, 12288
    LDS_MODE = 10240 + 1024
    vCnt, vInit, vRet, vMd = 52, 53, 54, 55
    sMode, sRk = 75, 43
    vZero = 56
    SRW = 76
    STB = 56

    def salu(t, srd=()): I(t, 'salu', srd=srd)
    def valu(t, rd=(), wr=(), srd=(), swr=()): I(t, 'valu', rd=rd, wr=wr, srd=srd, swr=swr)
    def dpp(t, dp, rd=(), wr=()): I(t, 'valu', rd=rd, wr=wr, dpp=dp)
    def stamp(n):
        if stamps or dbgst:
            E.raw("s_memrealtime s[%d:%d]" % (STB + 2 * n, STB + 1 + 2 * n))

    def decode(m):
        ph, r = m >> 7, m & 127
        bt, j = r >> 4, r & 15
        return ph, bt, j >> 3, j & 7
    def slot(m): return RING + 4 * (m & 15)
    state = dict(issued=0, based=-1)
    def main_base(gb):
        a, b = sM[gb & 1]
        bt = gb & 7
        off = (bt >> 1) * 131072
        sb = sBaseO if (bt & 1) else sBase
        if kx:
            salu("s_xor_b32 %s, %s, %d" % (sr(a), sr(sb), off))
            salu("s_add_u32 %s, %s, 0x80000" % (sr(b), sr(a)))
            return
        salu("s_add_u32 %s, %s, %d" % (sr(a), sr(sb), off))
        if hsplit == 2:
            salu("s_add_u32 %s, %s, %s" % (sr(b), sr(a), sr(sHD)))
        else:
            salu("s_add_u32 %s, %s, %d" % (sr(b), sr(sb), off + (0x8000000 if hsplit else 0x80000)))
    def issue_upto(mx):
        mx = min(mx, 255)
        while state['issued'] <= mx:
            m = state['issued']
            ph, bt, hh, t = decode(m)
            gb = m >> 4
            if state['based'] < gb:
                main_base(gb); state['based'] = gb
            r = slot(m)
            E.load("buffer_load_dwordx4 %s, %s, %s, %s offen offset:%d %s" % (
                vr(r, 4), vr(vMain), sr(SRM_V if ph else SRM_K, 4), sr(sM[gb & 1][hh]), t * 256, ntflag),
                tag=('m', m), rd=[vMain], wr=rng(r, 4))
            state['issued'] += 1
    def e_load(k, n):
        if emode == 'B':
            so, io = n * 32768, k * 1024
        else:
            so, io = (n >> 1) * 65536, k * 1024
        if kx:
            salu("s_xor_b32 %s, s85, %d" % (sr(sEo), so + io)); io = 0
        else:
            salu("s_add_u32 %s, %s, %d" % (sr(sEo), sr(sW128 if emode == 'B' else (sEb if n & 1 else sEa)), so))
        E.load("buffer_load_dwordx4 %s, %s, %s, %s offen offset:%d" % (vr(ES + 4 * n, 4), vr(vE_), sr(SRE, 4), sr(sEo), io),
               tag=('e', k, n), rd=[vE_], wr=rng(ES + 4 * n, 4))
    def f_load(n):
        g, u = n >> 4, n & 15
        salu("s_add_u32 %s, %s, %d" % (sr(sT), sr(sW128), u * 4096))
        if kx and n == 16: valu("v_xor_b32 %s, 0x800, %s" % (vr(vF), vr(vF)), rd=[vF], wr=[vF])
        E.load("buffer_load_dwordx4 %s, %s, %s, %s offen offset:%d" % (vr(FS + 4 * u, 4), vr(vF), sr(SRF, 4), sr(sT), 0 if kx else g * 2048),
               tag=('f', n), rd=[vF], wr=rng(FS + 4 * u, 4))

    def look(m):
        base = L
        ph_l = LK if m < 128 else (LV1 if m < 192 else LV2)
        if ph_l is not None: base = ph_l[m % len(ph_l)]
        if endn and m >= 256 - endn: base = Lend
        if Lstart and m < Lstart: base = max(base, Lstart - m)
        if tailboost and m < 128 and (m & 15) == 15: base += tailboost
        if 127 - midramp < m <= 127:
            base = max(base, L + (Lmid - L) * (m - (127 - midramp)) // midramp)
        return min(base, 15)

    LA = 4
    lab = [0]
    dynmap = {j: (hi, lo) for (j, hi, lo) in dyn}
    def step_wait_issue(m):
        lk = look(m)
        if lk != 3 or not fb:
            E.vmwait([('m', m)]); issue_upto(m + lk); return
        tgt = m + LA
        if tgt > 255 or state['issued'] > tgt:
            E.vmwait([('m', m)]); return
        if state['issued'] < tgt:
            E.vmwait([('m', m)]); issue_upto(tgt - 1)
        j = m % dynper
        if j in dynmap:
            hi, lo = dynmap[j]
            name = "L_d%d%s" % (lab[0], suffix); lab[0] += 1
            E.vmwait([('m', m)])
            salu("s_cmp_ge_u32 %s, %d" % (sr(sMode), hi))
            salu("s_cbranch_scc1 %s" % name)
            E.vmwait([('m', m + 1)])
            salu("s_cmp_gt_u32 %s, %d" % (sr(sMode), lo))
            salu("s_cbranch_scc1 %s" % name)
            E.vmwait([('m', m + 2)])
            E.pos -= 4
            E.label(name, flush=False)
        else:
            E.vmwait([('m', m + 1)])
        issue_upto(tgt)
    def is_ck(b):
        if cks is not None: return b in cks
        return 0 <= b < 15 and (b % ck_every) == ck_every - 1 and b != 7
    regs = dict(cnt=vCnt, init=vInit, ret=vRet, md=vMd)
    def init_load():
        salu("s_mov_b64 exec, 0xffff")
        E.load("buffer_load_dword %s, %s, %s, 0 offen sc1" % (vr(vInit), vr(vCnt), sr(SRW, 4)), tag=('i', 0), rd=[vCnt], wr=[vInit])
        salu("s_mov_b64 exec, -1")
    def warm_load():
        salu("s_lshr_b32 %s, s2, 3" % sr(sT))
        salu("s_and_b32 %s, %s, 31" % (sr(sT), sr(sT)))
        salu("s_lshl_b32 %s, %s, 3" % (sr(sT), sr(sT)))
        salu("s_add_u32 %s, %s, s3" % (sr(sT), sr(sT)))
        salu("s_lshl_b32 %s, %s, 10" % (sr(sT), sr(sT)))
        valu("v_lshlrev_b32 v57, 4, v0", rd=[0], wr=[57])
        E.load("buffer_load_dwordx4 %s, v57, %s, %s offen" % (vr(PD, 4), sr(SRE, 4), sr(sT)), tag=('w', 0), rd=[57], wr=rng(PD, 4))
        E.load("buffer_load_dwordx4 %s, v57, %s, %s offen" % (vr(PD + 4, 4), sr(SRF, 4), sr(sT)), tag=('w', 1), rd=[57], wr=rng(PD + 4, 4))
    def fb_hooks(m):
        if warm and warmat == m: warm_load()
        if not fb: return
        if initat == m: init_load()
        gb, j = m >> 4, m & 15
        if j == 15 and is_ck(gb):
            if satom:
                name = "L_a%d%s" % (lab[0], suffix); lab[0] += 1
                salu("s_cmp_lg_u32 s3, 0")
                salu("s_cbranch_scc1 %s" % name)
                I("v_readlane_b32 s83, %s, %d" % (vr(regs['cnt']), gb), 'rdlane', rd=[regs['cnt']], swr=[83])
                salu("s_mov_b32 %s, 1" % sr(sRk))
                E.nop(4)
                salu("s_and_b32 s83, s83, 0xfff80")
                salu("s_atomic_add %s, s[76:77], s83 glc" % sr(sRk))
                E.pos -= 8
                E.label(name, flush=False)
            elif not noatom:
                salu("s_mov_b64 exec, 0x%x" % (1 << gb))
                E.load("buffer_atomic_add %s, %s, %s, 0 offen sc0 sc1" % (vr(regs['ret']), vr(regs['cnt']), sr(SRW, 4)),
                       tag=('a', gb), rd=[regs['ret'], regs['cnt']], wr=[regs['ret']], nocount=not counted)
                salu("s_mov_b64 exec, -1")
        pk = gb - 1
        if is_ck(pk):
            if j == dly[0]:
                if satom:
                    I("v_readlane_b32 s82, %s, %d" % (vr(regs['init']), pk), 'rdlane', rd=[regs['init']], swr=[82])
                    E.raw("s_waitcnt lgkmcnt(0)")
                    salu("s_sub_u32 %s, %s, s82" % (sr(sRk), sr(sRk)), srd=[82])
                else:
                    if not noatom: E.vmwait([('a', pk)])
                    valu("v_sub_u32 %s, %s, %s" % (vr(regs['md']), vr(regs['ret']), vr(regs['init'])), rd=[regs['ret'], regs['init']], wr=[regs['md']])
                    I("v_readlane_b32 %s, %s, %d" % (sr(sRk), vr(regs['md']), pk), 'rdlane', rd=[regs['md']], swr=[sRk])
                salu("s_min_u32 %s, %s, %d" % (sr(sRk), sr(sRk), G - 1), srd=[sRk])
                if pi is not None:
                    kp, sh, amax, umax = pi
                    salu("s_lshl_b32 %s, %s, 1" % (sr(sRk), sr(sRk)))
                    salu("s_sub_i32 %s, %s, %d" % (sr(sRk), sr(sRk), G - 1))
                    salu("s_add_i32 s84, s84, %s" % sr(sRk))
                    salu("s_min_i32 s84, s84, %d" % amax)
                    salu("s_max_i32 s84, s84, %d" % -amax)
                    salu("s_mul_i32 %s, %s, %d" % (sr(sRk), sr(sRk), kp))
                    salu("s_add_i32 %s, %s, s84" % (sr(sRk), sr(sRk)))
                    salu("s_add_i32 %s, %s, %d" % (sr(sRk), sr(sRk), (1 << sh) >> 1))
                    salu("s_ashr_i32 %s, %s, %d" % (sr(sRk), sr(sRk), sh))
                    salu("s_min_i32 %s, %s, %d" % (sr(sRk), sr(sRk), umax))
                    salu("s_max_i32 %s, %s, %d" % (sr(sRk), sr(sRk), -umax))
                    salu("s_add_i32 %s, %s, %d" % (sr(sRk), sr(sRk), center))
                elif table is not None:
                    salu("s_lshl_b32 %s, %s, 2" % (sr(sRk), sr(sRk)))
                    salu("s_lshr_b32 %s, 0x%x, %s" % (sr(sRk), table_end if (table_end and pk >= tend) else table, sr(sRk)))
                    salu("s_and_b32 %s, %s, 7" % (sr(sRk), sr(sRk)))
                else:
                    salu("s_mul_i32 %s, %s, %d" % (sr(sRk), sr(sRk), mapk))
                    salu("s_lshr_b32 %s, %s, 4" % (sr(sRk), sr(sRk)))
                    if mapk == 3: salu("s_add_u32 %s, %s, 1" % (sr(sRk), sr(sRk)))
                if force_mode is not None: salu("s_mov_b32 %s, %d" % (sr(sRk), force_mode))
                valu("v_mov_b32 %s, %s" % (vr(regs['md']), sr(sRk)), wr=[regs['md']])
                name = "L_w%d%s" % (lab[0], suffix); lab[0] += 1
                salu("s_cmp_lg_u32 s3, 0")
                salu("s_cbranch_scc1 %s" % name)
                I("ds_write_b32 v31, %s offset:%d" % (vr(regs['md']), LDS_MODE), 'ds', rd=[31, regs['md']]) if False else \
                I("ds_write_b32 %s, %s offset:%d" % (vr(vZero), vr(regs['md']), LDS_MODE), 'ds', rd=[vZero, regs['md']])
                E.pos -= 1
                E.label(name, flush=False)
            if j == dly[1]:
                I("ds_read_b32 %s, %s offset:%d" % (vr(regs['md']), vr(vZero), LDS_MODE), 'ds', rd=[vZero], wr=[regs['md']])
            if j == dly[2]:
                E.raw("s_waitcnt lgkmcnt(0)")
                I("v_readfirstlane_b32 %s, %s" % (sr(sMode), vr(regs['md'])), 'rdlane', rd=[regs['md']], swr=[sMode])
                E.nop(1)

    E.mark('P0')
    salu("s_cmp_ge_u32 s2, 256")
    salu("s_cbranch_scc1 L_end")
    stamp(0)
    salu("s_load_dwordx8 s[4:11], s[0:1], 0")
    salu("s_load_dwordx4 s[12:15], s[0:1], 32")
    if fb: salu("s_load_dwordx2 s[76:77], s[0:1], 56")
    valu("v_lshrrev_b32 v5, 6, v0", rd=[0], wr=[5])
    valu("v_and_b32 v0, 63, v0", rd=[0], wr=[0])
    I("v_readfirstlane_b32 s3, v5", 'rdlane', rd=[5], swr=[3])
    valu("v_and_b32 v5, 15, v0", rd=[0], wr=[5])
    valu("v_lshrrev_b32 v6, 4, v0", rd=[0], wr=[6])
    valu("v_lshlrev_b32 v7, 4, v5", rd=[5], wr=[7])
    valu("v_lshl_add_u32 v1, v6, %d, v7" % (12 if gm2 else 11), rd=[6, 7], wr=[1])
    if wgmix:
        salu("s_lshr_b32 %s, s2, %d" % (sr(sWG), wgmix))
        salu("s_and_b32 %s, %s, 7" % (sr(sWG), sr(sWG)))
        salu("s_xor_b32 %s, %s, s2" % (sr(sWG), sr(sWG)))
    else:
        salu("s_mov_b32 %s, s2" % sr(sWG))
    salu("s_lshl_b32 %s, %s, %d" % (sr(sBase), sr(sWG), 19 if hsplit else 20))
    if hsplit == 2:
        salu("s_lshl_b32 %s, %s, 1" % (sr(sHD), sr(sWG)))
        salu("s_sub_u32 %s, 511, %s" % (sr(sHD), sr(sHD)))
        salu("s_lshl_b32 %s, %s, 8" % (sr(sQ1), sr(sHD)))
        salu("s_lshl_b32 %s, %s, 19" % (sr(sHD), sr(sHD)))
    else:
        salu("s_mov_b32 %s, %d" % (sr(sQ1), 65536 if hsplit else 256))
    salu("s_lshl_b32 %s, s3, 14" % sr(sT), srd=[3])
    salu("s_add_u32 %s, %s, %s" % (sr(sBase), sr(sBase), sr(sT)))
    salu("s_lshl_b32 %s, s3, 7" % sr(sW128))
    if pbit >= 256:
        salu("s_lshr_b32 %s, 0x%x, s3" % (sr(sPW), pbit & 255))
    else:
        salu("s_lshr_b32 %s, s3, %d" % (sr(sPW), pbit))
    salu("s_and_b32 %s, %s, 1" % (sr(sPW), sr(sPW)))
    salu("s_lshl_b32 %s, %s, %d" % (sr(sT), sr(sPW), 11 if gm2 else 13))
    salu("s_add_u32 %s, %s, %s" % (sr(sBase), sr(sBase), sr(sT)))
    if kx:
        if isinstance(kx, int):
            salu("s_lshl_b32 s86, s3, 1")
            salu("s_lshr_b32 s86, 0x%x, s86" % kx)
            salu("s_and_b32 s86, s86, 3")
        else:
            src, sh, mul = kx
            salu("s_lshr_b32 s86, %s, %d" % (src, sh))
            salu("s_mul_i32 s86, s86, %d" % mul)
            salu("s_and_b32 s86, s86, 3")
        salu("s_lshl_b32 %s, s86, 17" % sr(sT))
        salu("s_add_u32 %s, %s, %s" % (sr(sBase), sr(sBase), sr(sT)))
        salu("s_lshl_b32 s86, s86, 10")
        salu("s_add_u32 s85, %s, s86" % sr(sW128))
    salu("s_xor_b32 %s, %s, %s" % (sr(sBaseO), sr(sBase), "0x800" if gm2 else "0x2000"))
    salu("s_mov_b32 s18, 0x10000000")
    salu("s_mov_b32 s19, 0x00020000")
    salu("s_mov_b32 s30, 0x20000")
    salu("s_mov_b32 s31, 0x00020000")
    salu("s_lshl_b32 %s, %s, %d" % (sr(sT2), sr(sWG), 8 if hsplit else 9))
    salu("s_add_u32 %s, %s, %s" % (sr(sEo), sr(sT2), sr(sQ1)))
    main_base(0); state['based'] = 0
    E.raw("s_waitcnt lgkmcnt(0)")
    salu("s_mov_b32 s16, s6")
    salu("s_mov_b32 s17, s7")
    salu("s_mov_b32 s28, s4")
    salu("s_mov_b32 s29, s5")
    issue_upto(0)
    for hh in range(2):
        E.load("buffer_load_dwordx4 %s, v7, %s, %s offen" % (vr(Q + 4 * hh, 4), sr(SRQ, 4), sr(sEo if hh else sT2)),
               tag=('q', hh), rd=[7], wr=rng(Q + 4 * hh, 4))
    issue_upto(look(0) - 1)
    salu("s_mov_b32 s48, s8"); salu("s_mov_b32 s49, s9"); salu("s_mov_b32 s50, 0x10000000"); salu("s_mov_b32 s51, 0x00020000")
    salu("s_mov_b32 s20, s10"); salu("s_mov_b32 s21, s11"); salu("s_mov_b32 s22, %s" % ("0" if nullE else "0x40000")); salu("s_mov_b32 s23, 0x00020000")
    salu("s_mov_b32 s24, s12"); salu("s_mov_b32 s25, s13"); salu("s_mov_b32 s26, %s" % ("0" if nullF else "0x40000")); salu("s_mov_b32 s27, 0x00020000")
    if warm and warmat is None: warm_load()
    if tlbw:
        valu("v_mov_b32 v31, 0", wr=[31])
        salu("s_lshl_b32 %s, %s, 20" % (sr(sT), sr(sWG)))
        salu("s_lshl_b32 %s, s3, 17" % sr(sEo))
        salu("s_add_u32 %s, %s, %s" % (sr(sT), sr(sT), sr(sEo)))
        E.load("buffer_load_dword %s, v31, %s, %s offen nt" % (vr(PD + 8), sr(SRM_V, 4), sr(sT)), tag=('w', 2), rd=[31], wr=[PD + 8])
        if tlbw > 1:
            salu("s_mov_b32 s76, s14"); salu("s_mov_b32 s77, s15"); salu("s_mov_b32 s78, 0x20000"); salu("s_mov_b32 s79, 0x00020000")
            E.load("buffer_load_dword %s, v31, s[76:79], %s offen nt" % (vr(PD + 9), sr(sT2)), tag=('w', 3), rd=[31], wr=[PD + 9])
    valu("v_and_b32 v29, 7, v5", rd=[5], wr=[29])
    valu("v_lshrrev_b32 v30, 3, v5", rd=[5], wr=[30])
    if emode == 'B':
        valu("v_lshlrev_b32 v2, 12, v29", rd=[29], wr=[2])
        valu("v_lshl_add_u32 v2, v30, %d, v2" % (4 if gm2 else 6), rd=[30, 2], wr=[2])
    else:
        valu("v_lshlrev_b32 v2, 12, v5", rd=[5], wr=[2])
    valu("v_lshl_add_u32 v2, v6, %d, v2" % (5 if gm2 else 4), rd=[6, 2], wr=[2])
    valu("v_lshlrev_b32 v3, 16, v6", rd=[6], wr=[3])
    valu("v_lshl_add_u32 v3, v30, 10, v3", rd=[30, 3], wr=[3])
    if gm2:
        valu("v_and_b32 v28, 3, v5", rd=[5], wr=[28])
        valu("v_lshl_add_u32 v3, v28, 5, v3", rd=[28, 3], wr=[3])
        valu("v_bfe_u32 v28, v5, 2, 1", rd=[5], wr=[28])
        valu("v_lshl_add_u32 v3, v28, 4, v3", rd=[28, 3], wr=[3])
    else:
        valu("v_lshl_add_u32 v3, v29, 4, v3", rd=[29, 3], wr=[3])
    salu("s_mov_b32 %s, 0x07060302" % sr(sPerm))
    salu("s_mov_b32 %s, 0xffff0000" % sr(sHi))
    c = (128 ** -0.5) * math.log2(math.e)
    salu("s_mov_b32 %s, 0x%08x" % (sr(sC), struct.unpack('<I', struct.pack('<f', c))[0]))
    salu("s_cmp_eq_u32 %s, 0" % sr(sPW))
    salu("s_mov_b32 s54, 0xcccccccc")
    salu("s_cselect_b32 s54, s54, 0x33333333")
    salu("s_mov_b32 s55, s54")
    salu("s_lshl_b32 %s, %s, %d" % (sr(sT), sr(sPW), 4 if gm2 else 6))
    valu("v_xor_b32 v3, %s, v3" % sr(sT), rd=[3], wr=[3])
    if kx: valu("v_xor_b32 v3, s86, v3", rd=[3], wr=[3])
    salu("s_add_u32 %s, %s, %s" % (sr(sEa), sr(sW128), sr(sT)))
    salu("s_xor_b32 %s, %s, 64" % (sr(sEb), sr(sEa)))
    valu("v_and_b32 v4, 1, v5", rd=[5], wr=[4])
    valu("v_mul_u32_u24 v28, 16, v4", rd=[4], wr=[28])
    valu("v_sub_u32 v4, 0, v4", rd=[4], wr=[4])
    valu("v_and_b32 v4, 0xffff0000, v4", rd=[4], wr=[4])
    valu("v_mul_u32_u24 v29, 0x0202, v30", rd=[30], wr=[29])
    valu("v_sub_u32 v29, 0x0302, v29", rd=[29], wr=[29])
    valu("v_lshlrev_b32 v29, v28, v29", rd=[28, 29], wr=[29])
    valu("v_mov_b32 v30, 0x0c0c0000", wr=[30])
    valu("v_lshrrev_b32 v30, v28, v30", rd=[28, 30], wr=[30])
    valu("v_or_b32 v29, v29, v30", rd=[29, 30], wr=[29])
    valu("v_bfe_u32 v30, v5, 1, 2", rd=[5], wr=[30])
    valu("v_mov_b32 v31, 0x0c0c0c0c", wr=[31])
    for k in range(4):
        valu("v_cmp_eq_u32 vcc, %d, v30" % k, rd=[30], swr=['vcc'])
        valu("v_cndmask_b32 %s, v31, v29, vcc" % vr(SEL + k), rd=[31, 29], wr=[SEL + k], srd=['vcc'])
    if fb:
        salu("s_mov_b32 s78, 0x100000"); salu("s_mov_b32 s79, 0x00020000")
        if G == 16:
            salu("s_lshr_b32 %s, s2, 4" % sr(sT))
            valu("v_mov_b32 %s, %s" % (vr(vCnt), sr(sT)), wr=[vCnt])
        else:
            salu("s_and_b32 %s, s2, 7" % sr(sT))
            salu("s_lshr_b32 %s, s2, 3" % sr(sEo))
            valu("v_lshl_add_u32 %s, v5, 1, 1" % vr(vCnt), rd=[5], wr=[vCnt])
            valu("v_mul_u32_u24 %s, %s, %s" % (vr(vCnt), sr(sT), vr(vCnt)), rd=[vCnt], wr=[vCnt])
            valu("v_add_u32 %s, %s, %s" % (vr(vCnt), sr(sEo), vr(vCnt)), rd=[vCnt], wr=[vCnt])
            valu("v_and_b32 %s, 31, %s" % (vr(vCnt), vr(vCnt)), rd=[vCnt], wr=[vCnt])
            if G == 4:
                valu("v_mul_u32_u24 %s, 11, v5" % vr(vMd), rd=[5], wr=[vMd])
                valu("v_lshrrev_b32 %s, 5, %s" % (vr(vMd), vr(vMd)), rd=[vMd], wr=[vMd])
                valu("v_mul_u32_u24 %s, 3, %s" % (vr(vMd), vr(vMd)), rd=[vMd], wr=[vMd])
                valu("v_sub_u32 %s, v5, %s" % (vr(vMd), vr(vMd)), rd=[5, vMd], wr=[vMd])
                valu("v_lshrrev_b32 %s, %s, %s" % (vr(vMd), vr(vMd), sr(sT)), rd=[vMd], wr=[vMd])
                valu("v_and_b32 %s, 1, %s" % (vr(vMd), vr(vMd)), rd=[vMd], wr=[vMd])
                valu("v_lshl_add_u32 %s, %s, 1, %s" % (vr(vCnt), vr(vCnt), vr(vMd)), rd=[vCnt, vMd], wr=[vCnt])
            if G == 2:
                valu("v_mul_u32_u24 %s, 37, v5" % vr(vMd), rd=[5], wr=[vMd])
                valu("v_lshrrev_b32 %s, 8, %s" % (vr(vMd), vr(vMd)), rd=[vMd], wr=[vMd])
                valu("v_mul_u32_u24 %s, 7, %s" % (vr(vMd), vr(vMd)), rd=[vMd], wr=[vMd])
                valu("v_sub_u32 %s, v5, %s" % (vr(vMd), vr(vMd)), rd=[5, vMd], wr=[vMd])
                valu("v_add_u32 %s, 1, %s" % (vr(vMd), vr(vMd)), rd=[vMd], wr=[vMd])
                valu("v_xor_b32 %s, %s, %s" % (vr(vMd), sr(sT), vr(vMd)), rd=[vMd], wr=[vMd])
                valu("v_min_u32 %s, %s, %s" % (vr(vMd), sr(sT), vr(vMd)), rd=[vMd], wr=[vMd])
                valu("v_lshl_add_u32 %s, %s, 3, %s" % (vr(vCnt), vr(vCnt), vr(vMd)), rd=[vCnt, vMd], wr=[vCnt])
        valu("v_lshl_add_u32 %s, v5, %d, %s" % (vr(vCnt), 8 if G == 2 else 6, vr(vCnt)), rd=[5, vCnt], wr=[vCnt])
        valu("v_lshlrev_b32 %s, %d, %s" % (vr(vCnt), 7 if G == 2 else 8, vr(vCnt)), rd=[vCnt], wr=[vCnt])
        salu("s_cmp_eq_u32 s3, 0")
        salu("s_mov_b32 %s, 0x80000" % sr(sT))
        salu("s_cselect_b32 %s, %s, 0x7ff00000" % (sr(sT), sr(sT)))
        valu("v_add_u32 %s, %s, %s" % (vr(vCnt), sr(sT), vr(vCnt)), rd=[vCnt], wr=[vCnt])
        valu("v_mov_b32 %s, 1" % vr(vRet), wr=[vRet])
        valu("v_mov_b32 %s, 0" % vr(vZero), wr=[vZero])
        valu("v_mov_b32 %s, %d" % (vr(vMd), center), wr=[vMd])
        salu("s_mov_b32 %s, %d" % (sr(sMode), center))
        salu("s_mov_b32 s84, 0")
        if initat is None: init_load()
        I("ds_write_b32 %s, %s offset:%d" % (vr(vZero), vr(vMd), LDS_MODE), 'ds', rd=[vZero, vMd])
    E.vmwait([('q', 0), ('q', 1)])
    stamp(1)

    aux = {}
    if emode == 'B': ep = epos or [0, 3, 6, 9, 14, 17, 20, 23]
    else: ep = epos or [0, 0, 3, 3, 6, 6, 9, 9]
    for k in range(4):
        for n in range(8): aux.setdefault(k * 32 + ep[n], []).append(('e', k, n))
    fk = fposK or ([12, 26, 28, 30] if emode == 'B' else [14, 18, 22, 26])
    fpos = [k * 32 + j for k in range(4) for j in fk]
    fpos[-4:] = [96 + j for j in (1, 4, 12, 15)]
    fpos += [128 + bt * 16 + j for bt in range(4) for j in (fposV or (0, 4, 8, 11))]
    for n, pos in enumerate(fpos): aux.setdefault(pos, []).append(('f', n))

    def red(t, lvl):
        p = P + t
        if lvl == 0:
            dpp("v_add_f32_dpp %s, %s, %s row_ror:8 row_mask:0xf bank_mask:0x3" % (vr(p), vr(p), vr(p)), [p], rd=[p], wr=[p])
        elif lvl == 1:
            tt = T + (t & 1)
            dpp("v_add_f32_dpp %s, %s, %s row_ror:8 row_mask:0xf bank_mask:0xc" % (vr(p), vr(tt), vr(tt)), [tt], rd=[tt, p], wr=[p])
        elif lvl == 2:
            dpp("v_add_f32_dpp %s, %s, %s row_half_mirror row_mask:0xf bank_mask:0xf" % (vr(p), vr(p), vr(p)), [p], rd=[p], wr=[p])
        elif lvl == 3:
            dpp("v_add_f32_dpp %s, %s, %s quad_perm:[1,0,3,2] row_mask:0xf bank_mask:0xf" % (vr(p), vr(p), vr(p)), [p], rd=[p], wr=[p])
        elif lvl == 4:
            dpp("v_add_f32_dpp %s, %s, %s quad_perm:[2,3,0,1] row_mask:0xf bank_mask:0xf" % (vr(p), vr(p), vr(p)), [p], rd=[p], wr=[p])
        elif lvl == 5:
            valu("v_and_b32 %s, %s, %s" % (vr(30 + (t & 1)), vr(p), vr(vMB)), rd=[p, vMB], wr=[30 + (t & 1)])
            valu("v_sub_f32 %s, %s, %s" % (vr(p), vr(p), vr(30 + (t & 1))), rd=[p, 30 + (t & 1)], wr=[p])

    for bt in range(8):
        done = set(); ready = {}
        for j in range(16):
            m = bt * 16 + j
            ph, _, hh, t = decode(m)
            step_wait_issue(m)
            for a in aux.get(m, []):
                if a[0] == 'e': e_load(a[1], a[2])
                else: f_load(a[1])
            fb_hooks(m)
            r = slot(m)
            dst = (P + t) if hh == 0 else (T + (t & 1))
            for k in range(4):
                c_ = "0" if k == 0 else vr(dst)
                I("v_dot2_f32_bf16 %s, %s, %s, %s" % (vr(dst), vr(r + k), vr(Q + 4 * hh + k), c_), 'dot',
                  rd=[r + k, Q + 4 * hh + k], wr=[dst], creads=([dst] if k else []))
            todo = []
            for tt in range(8):
                for lvl in range(6):
                    if (tt, lvl) in done: continue
                    if lvl == 0: dep = ready.get((tt, 'h0'))
                    elif lvl == 1:
                        d1, d2 = ready.get((tt, 'h1')), ready.get((tt, 0))
                        dep = None if d1 is None or d2 is None else max(d1, d2)
                    else: dep = ready.get((tt, lvl - 1))
                    if dep is not None and dep < j: todo.append((tt, lvl))
                    break
            for (tt, lvl) in todo:
                red(tt, lvl); done.add((tt, lvl)); ready[(tt, lvl)] = j
            ready[(t, 'h%d' % hh)] = j
        while len(done) < 48:
            todo = []
            for tt in range(8):
                for lvl in range(6):
                    if (tt, lvl) in done: continue
                    todo.append((tt, lvl)); break
            for (tt, lvl) in todo:
                red(tt, lvl); done.add((tt, lvl))
        kp = bt >> 1
        if emode == 'B':
            dstb = BE if (bt & 1) == 0 else P
            for k in range(4):
                valu("v_perm_b32 %s, %s, %s, %s" % (vr(dstb + k), vr(P + 2 * k + 1), vr(P + 2 * k), sr(sPerm)),
                     rd=[P + 2 * k, P + 2 * k + 1], wr=[dstb + k])
            if bt & 1:
                for k in range(4):
                    valu("v_cndmask_b32 %s, %s, %s, s[54:55]" % (vr(BE + k), vr(BE + k), vr(P + k)), rd=[BE + k, P + k], wr=[BE + k])
                E.vmwait([('e', kp, n) for n in range(8)])
                for n in range(8):
                    c_ = "0" if kp == 0 else vr(S + 4 * n, 4)
                    I("v_mfma_f32_16x16x32_bf16 %s, %s, %s, %s" % (vr(S + 4 * n, 4), vr(ES + 4 * n, 4), vr(BE, 4), c_), 'mfma',
                      rd=rng(ES + 4 * n, 4) + rng(BE, 4), wr=rng(S + 4 * n, 4), creads=(rng(S + 4 * n, 4) if kp else []))
        else:
            for k in range(4):
                valu("v_perm_b32 %s, %s, %s, %s" % (vr(P + k), vr(P + 2 * k + 1), vr(P + 2 * k), sr(sPerm)),
                     rd=[P + 2 * k, P + 2 * k + 1], wr=[P + k])
            E.vmwait([('e', kp, 2 * rt + (bt & 1)) for rt in range(4)])
            for rt in range(4):
                c_ = "0" if bt == 0 else vr(S + 4 * rt, 4)
                es = ES + 4 * (2 * rt + (bt & 1))
                I("v_mfma_f32_16x16x32_bf16 %s, %s, %s, %s" % (vr(S + 4 * rt, 4), vr(es, 4), vr(P, 4), c_), 'mfma',
                  rd=rng(es, 4) + rng(P, 4), wr=rng(S + 4 * rt, 4), creads=(rng(S + 4 * rt, 4) if bt else []))
    stamp(2)
    valu("v_bfe_u32 v5, v0, 3, 1", rd=[0], wr=[5])
    valu("v_lshrrev_b32 v6, 4, v0", rd=[0], wr=[6])
    valu("v_lshlrev_b32 v7, 8, v5", rd=[5], wr=[7])
    if emode == 'B':
        nS, nPart = 32, 16
        valu("v_lshrrev_b32 v28, 1, v6", rd=[6], wr=[28])
        valu("v_lshl_add_u32 v7, v28, 9, v7", rd=[28, 7], wr=[7])
        valu("v_and_b32 v28, 1, v6", rd=[6], wr=[28])
        valu("v_lshl_add_u32 v7, v28, 4, v7", rd=[28, 7], wr=[7])
        salu("s_lshl_b32 %s, s3, 10" % sr(sT))
    else:
        nS, nPart = 16, 8
        valu("v_lshl_add_u32 v7, v6, 4, v7", rd=[6, 7], wr=[7])
        salu("s_lshl_b32 %s, s3, 9" % sr(sT))
    valu("v_add_u32 v7, %s, v7" % sr(sT), rd=[7], wr=[7])
    for r in range(nS):
        dpp("v_add_f32_dpp %s, %s, %s quad_perm:[1,0,3,2] row_mask:0xf bank_mask:0xf" % (vr(S + r), vr(S + r), vr(S + r)),
            [S + r], rd=[S + r], wr=[S + r])
    salu("s_mov_b32 exec_lo, 0x01010101")
    salu("s_mov_b32 exec_hi, %s" % ("0x04040404" if emode == 'B' else "0x01010101"))
    for n in range(nS // 4):
        I("ds_write_b128 v7, %s offset:%d" % (vr(S + 4 * n, 4), LDS_PART + n * (32 if emode == 'B' else 64)), 'ds', rd=[7] + rng(S + 4 * n, 4))
    salu("s_mov_b64 exec, -1")
    valu("v_lshlrev_b32 v7, 2, v0", rd=[0], wr=[7])
    E.raw("s_waitcnt lgkmcnt(0)")
    E.raw("s_barrier")
    for w in range(nPart):
        I("ds_read2st64_b32 %s, v7 offset0:%d offset1:%d" % (vr(S + 2 * w, 2), 2 * w, 2 * w + 1), 'ds', rd=[7], wr=rng(S + 2 * w, 2))
    salu("s_lshl_b32 %s, s3, 8" % sr(sT))
    valu("v_add_u32 v7, %s, v7" % sr(sT), rd=[7], wr=[7])
    valu("v_lshlrev_b32 v6, 6, v6", rd=[6], wr=[6])
    valu("v_add_u32 v6, %s, v6" % sr(sT), rd=[6], wr=[6])
    E.raw("s_waitcnt lgkmcnt(0)")
    step = 1
    while step < nPart:
        for w in range(0, nPart, 2 * step):
            a, b = S + 2 * w, S + 2 * (w + step)
            valu("v_pk_add_f32 %s, %s, %s" % (vr(a, 2), vr(a, 2), vr(b, 2)), rd=rng(a, 2) + rng(b, 2), wr=rng(a, 2))
        step *= 2
    X0, X1, M0, M1 = S, S + 1, S + 2, S + 3
    def wave_reduce(op, src0, src1, d0, d1):
        ctl = ["quad_perm:[1,0,3,2] row_mask:0xf bank_mask:0xf", "quad_perm:[2,3,0,1] row_mask:0xf bank_mask:0xf",
               "row_half_mirror row_mask:0xf bank_mask:0xf", "row_mirror row_mask:0xf bank_mask:0xf",
               "row_bcast:15 row_mask:0xa bank_mask:0xf", "row_bcast:31 row_mask:0xc bank_mask:0xf"]
        for n, c_ in enumerate(ctl):
            for (s_, d_) in ((src0, d0), (src1, d1)):
                s = s_ if n == 0 else d_
                dpp("%s_dpp %s, %s, %s %s" % (op, vr(d_), vr(s), vr(s), c_), [s], rd=[s, d_], wr=[d_])
        I("v_readlane_b32 %s, %s, 63" % (sr(sR0), vr(d0)), 'rdlane', rd=[d0], swr=[sR0])
        I("v_readlane_b32 %s, %s, 63" % (sr(sR1), vr(d1)), 'rdlane', rd=[d1], swr=[sR1])
    wave_reduce("v_max_f32", X0, X1, M0, M1)
    valu("v_subrev_f32 %s, %s, %s" % (vr(X0), sr(sR0), vr(X0)), rd=[X0], wr=[X0], srd=[sR0])
    valu("v_subrev_f32 %s, %s, %s" % (vr(X1), sr(sR1), vr(X1)), rd=[X1], wr=[X1], srd=[sR1])
    valu("v_mul_f32 %s, %s, %s" % (vr(X0), sr(sC), vr(X0)), rd=[X0], wr=[X0])
    valu("v_mul_f32 %s, %s, %s" % (vr(X1), sr(sC), vr(X1)), rd=[X1], wr=[X1])
    I("v_exp_f32 %s, %s" % (vr(X0), vr(X0)), 'trans', rd=[X0], wr=[X0])
    I("v_exp_f32 %s, %s" % (vr(X1), vr(X1)), 'trans', rd=[X1], wr=[X1])
    wave_reduce("v_add_f32", X0, X1, M0, M1)
    I("v_rcp_f32 %s, %s" % (vr(M0), sr(sR0)), 'trans', wr=[M0], srd=[sR0])
    I("v_rcp_f32 %s, %s" % (vr(M1), sr(sR1)), 'trans', wr=[M1], srd=[sR1])
    valu("v_mul_f32 %s, %s, %s" % (vr(X0), vr(X0), vr(M0)), rd=[X0, M0], wr=[X0])
    valu("v_mul_f32 %s, %s, %s" % (vr(X1), vr(X1), vr(M1)), rd=[X1, M1], wr=[X1])
    valu("v_cvt_pk_bf16_f32 %s, %s, %s" % (vr(M0), vr(X1), vr(X0)), rd=[X0, X1], wr=[M0])
    I("ds_write_b32 v7, %s offset:%d" % (vr(M0), LDS_PD), 'ds', rd=[7, M0])
    E.raw("s_waitcnt lgkmcnt(0)")
    for k in range(4):
        I("ds_read_b128 %s, v6 offset:%d" % (vr(PD + 4 * k, 4), LDS_PD + 16 * k), 'ds', rd=[6], wr=rng(PD + 4 * k, 4))
    def build_b(src, buf):
        for k in range(4):
            valu("v_perm_b32 %s, %s, %s, %s" % (vr(buf + k), vr(src), vr(src), vr(SEL + k)), rd=[src, SEL + k], wr=[buf + k])
    def f_stage(g):
        DA = ES; bufs = [ES + 4, ES + 8, ES + 12, ES + 16]
        E.vmwait([('f', 16 * g + u) for u in range(16)])
        build_b(PD, bufs[0])
        d = DA
        for u in range(16):
            if u < 15: build_b(PD + u + 1, bufs[(u + 1) & 3])
            b = bufs[u & 3]
            c_ = "0" if u == 0 else vr(d, 4)
            fs = FS + 4 * u
            I("v_mfma_f32_16x16x32_bf16 %s, %s, %s, %s" % (vr(d, 4), vr(fs, 4), vr(b, 4), c_), 'mfma',
              rd=rng(fs, 4) + rng(b, 4), wr=rng(d, 4), creads=(rng(d, 4) if u else []))
        I("v_permlane32_swap_b32 %s, %s" % (vr(d), vr(d + 2)), 'perml', rd=[d, d + 2], wr=[d, d + 2])
        I("v_permlane32_swap_b32 %s, %s" % (vr(d + 1), vr(d + 3)), 'perml', rd=[d + 1, d + 3], wr=[d + 1, d + 3])
        I("v_permlane16_swap_b32 %s, %s" % (vr(d), vr(d + 1)), 'perml', rd=[d, d + 1], wr=[d, d + 1])
        I("v_permlane16_swap_b32 %s, %s" % (vr(d + 2), vr(d + 3)), 'perml', rd=[d + 2, d + 3], wr=[d + 2, d + 3])
        prs = [(W + 4 * g + a, DA + a) for a in range(4)]
        for (w_, d_) in prs:
            valu("v_and_b32 %s, %s, %s" % (vr(w_), sr(sHi), vr(d_)), rd=[d_], wr=[w_])
        for (w_, d_) in prs:
            valu("v_sub_f32 %s, %s, %s" % (vr(w_), vr(d_), vr(w_)), rd=[d_, w_], wr=[w_])
        for (w_, d_) in prs:
            valu("v_perm_b32 %s, %s, %s, %s" % (vr(w_), vr(d_), vr(w_), sr(sPerm)), rd=[d_, w_], wr=[w_])
    E.raw("s_waitcnt lgkmcnt(0)")
    if fb:
        for nm, nr in (('cnt', 240), ('init', 241), ('ret', 242)):
            valu("v_mov_b32 %s, %s" % (vr(nr), vr(regs[nm])), rd=[regs[nm]], wr=[nr]); regs[nm] = nr
        regs['md'] = 243
        valu("v_mov_b32 v244, 0", wr=[244])
        vZero = 244
    f_stage(0)
    stamp(3)
    def prep(m):
        ph, a, hh, t = decode(m)
        xr = T + (m & 1)
        dpp("v_mov_b32_dpp %s, %s row_newbcast:%d row_mask:0xf bank_mask:0xf" % (vr(xr), vr(W + a), t + 8 * hh), [W + a], wr=[xr])
        build_b(xr, BB + 4 * (m & 3))
    prep(128)
    first = [True, True]
    for m in range(128, 256):
        ph, a, hh, t = decode(m)
        if m == 191:
            issue_upto(m + look(m) + 1 + (1 if fb else 0))
            f_stage(1)
        if m + 1 < 256: prep(m + 1)
        step_wait_issue(m)
        for a_ in aux.get(m, []): f_load(a_[1])
        fb_hooks(m)
        r = slot(m)
        b = BB + 4 * (m & 3)
        c_ = "0" if first[hh] else vr(O + 4 * hh, 4)
        I("v_mfma_f32_16x16x32_bf16 %s, %s, %s, %s" % (vr(O + 4 * hh, 4), vr(r, 4), vr(b, 4), c_), 'mfma',
          rd=rng(r, 4) + rng(b, 4), wr=rng(O + 4 * hh, 4), creads=([] if first[hh] else rng(O + 4 * hh, 4)))
        first[hh] = False
    stamp(4)
    R = 32
    valu("v_and_b32 v6, 7, v0", rd=[0], wr=[6])
    valu("v_lshlrev_b32 v6, 2, v6", rd=[6], wr=[6])
    valu("v_lshl_add_u32 v6, v5, 9, v6", rd=[5, 6], wr=[6])
    valu("v_lshrrev_b32 v7, 4, v0", rd=[0], wr=[7])
    valu("v_lshl_add_u32 v6, v7, 7, v6", rd=[7, 6], wr=[6])
    salu("s_lshl_b32 %s, s3, 10" % sr(sT))
    valu("v_add_u32 v6, %s, v6" % sr(sT), rd=[6], wr=[6])
    for t in range(4):
        dpp("v_add_f32_dpp %s, %s, %s row_ror:8 row_mask:0xf bank_mask:0x3" % (vr(R + t), vr(O + t), vr(O + t)), [O + t], rd=[O + t, R + t], wr=[R + t])
        dpp("v_add_f32_dpp %s, %s, %s row_ror:8 row_mask:0xf bank_mask:0xc" % (vr(R + t), vr(O + 4 + t), vr(O + 4 + t)), [O + 4 + t], rd=[O + 4 + t, R + t], wr=[R + t])
    for t in range(4):
        I("ds_write_b32 v6, %s offset:%d" % (vr(R + t), LDS_OP + 32 * t), 'ds', rd=[6, R + t])
    valu("v_lshlrev_b32 v6, 4, v0", rd=[0], wr=[6])
    valu("v_and_b32 v7, 31, v0", rd=[0], wr=[7])
    valu("v_lshlrev_b32 v7, 3, v7", rd=[7], wr=[7])
    valu("v_lshrrev_b32 v28, 5, v0", rd=[0], wr=[28])
    valu("v_mul_lo_u32 v28, %s, v28" % sr(sQ1), rd=[28], wr=[28])
    valu("v_add_u32 v7, v7, v28", rd=[7, 28], wr=[7])
    salu("s_mov_b32 s28, s14")
    salu("s_mov_b32 s29, s15")
    E.raw("s_waitcnt lgkmcnt(0)")
    E.raw("s_barrier")
    if stamps:
        stamp(5)
        salu("s_load_dwordx2 s[68:69], s[0:1], 56")
        salu("s_getreg_b32 s54, hwreg(HW_REG_XCC_ID)")
        salu("s_getreg_b32 s55, hwreg(HW_REG_HW_ID)")
        E.raw("s_waitcnt lgkmcnt(0)")
        salu("s_mov_b32 s70, 0x100000")
        salu("s_mov_b32 s71, 0x00020000")
        for n in range(6):
            valu("v_mov_b32 v%d, s%d" % (40 + n, STB + 2 * n), wr=[40 + n])
        valu("v_mov_b32 v46, s54", wr=[46])
        valu("v_mov_b32 v47, s55", wr=[47])
        salu("s_lshl_b32 s54, s2, 9")
        salu("s_lshl_b32 s55, s3, 5")
        salu("s_add_u32 s54, s54, s55")
        valu("v_mov_b32 v39, 0", wr=[39])
        I("buffer_store_dwordx4 v[40:43], v39, s[68:71], s54 offen", 'vmem', rd=[39])
        I("buffer_store_dwordx4 v[44:47], v39, s[68:71], s54 offen offset:16", 'vmem', rd=[39])
        E.raw("s_waitcnt vmcnt(0)")
    salu("s_cmp_lg_u32 s3, 0")
    salu("s_cbranch_scc1 L_end")
    if dbgst:
        stamp(5)
        salu("s_load_dwordx2 s[68:69], s[0:1], 48")
        salu("s_getreg_b32 s54, hwreg(HW_REG_XCC_ID)")
        E.raw("s_waitcnt lgkmcnt(0)")
        salu("s_mov_b32 s70, 0x100")
        salu("s_mov_b32 s71, 0x00020000")
        salu("s_sub_u32 s54, s2, 128")
        salu("s_lshl_b32 s54, s54, 3")
        salu("s_min_u32 s54, s54, 0x1000")
        salu("s_sub_u32 s55, s%d, s%d" % (STB + 6, STB))
        salu("s_lshl_b32 s55, s55, 16")
        salu("s_and_b32 s%d, s%d, 0xffff" % (STB, STB))
        salu("s_or_b32 s55, s55, s%d" % STB)
        valu("v_mov_b32 v100, s55", wr=[100])
        valu("v_mov_b32 v101, s%d" % (STB + 10), wr=[101])
        valu("v_mov_b32 v102, s54", wr=[102])
        salu("s_mov_b32 s70, 64")
        salu("s_mov_b64 exec, 1")
        I("buffer_store_dwordx2 v[100:101], v102, s[68:71], 0 offen", "vmem", rd=[102])
        salu("s_mov_b64 exec, -1")
    for w in range(8):
        I("ds_read_b128 %s, v6 offset:%d" % (vr(32 + 4 * w, 4), LDS_OP + 1024 * w), 'ds', rd=[6], wr=rng(32 + 4 * w, 4))
    E.raw("s_waitcnt lgkmcnt(0)")
    step = 1
    while step < 8:
        for w in range(0, 8, 2 * step):
            for hf in range(2):
                a, b = 32 + 4 * w + 2 * hf, 32 + 4 * (w + step) + 2 * hf
                valu("v_pk_add_f32 %s, %s, %s" % (vr(a, 2), vr(a, 2), vr(b, 2)), rd=rng(a, 2) + rng(b, 2), wr=rng(a, 2))
        step *= 2
    valu("v_cvt_pk_bf16_f32 v20, v32, v33", rd=[32, 33], wr=[20])
    valu("v_cvt_pk_bf16_f32 v21, v34, v35", rd=[34, 35], wr=[21])
    I("buffer_store_dwordx2 v[20:21], v7, %s, %s offen" % (sr(SRQ, 4), sr(sT2)), 'vmem', rd=[20, 21, 7])
    E.label("L_end", flush=False)
    E.raw("s_endpgm")
    E.mark('END')
    E.resolve([('P0', 'END', {})])
    if body_only:
        return E.text().replace("L_end", "L_end" + suffix)
    return wrap(path, E.text())

def gen_dual(path, even, odd, **kw):
    a = gen(None, body_only=True, suffix="_a", **dict(kw, **even))
    b = gen(None, body_only=True, suffix="_b", **dict(kw, **odd))
    pre = "    s_getreg_b32 s3, hwreg(HW_REG_XCC_ID)\n    s_bitcmp1_b32 s3, 0\n    s_cbranch_scc1 L_odd\n"
    wrap(path, pre + a + ".p2align 6\nL_odd:\n" + b)

def wrap(path, text):
    out = HEADER.replace("with a 32-deep register ring per wave", "with a bounded number of loads in flight per wave")
    out += """;   K phase : v_dot2 + DPP row reductions give s (kept as bf16 hi+lo), MFMA against E fragments accumulates scores
"""
    out += "; @launch grid=(256,1,1) block=(512,1,1) lds=20480\n"
    out += '.amdgcn_target "amdgcn-amd-amdhsa--gfx950"\n.text\n.globl %s\n.p2align 8\n.type %s,@function\n%s:\n' % (KN, KN, KN)
    out += text
    out += """.section .rodata,"a"
.p2align 6
.amdhsa_kernel %s
  .amdhsa_next_free_vgpr 256
  .amdhsa_next_free_sgpr 88
  .amdhsa_accum_offset 256
  .amdhsa_group_segment_fixed_size 0
  .amdhsa_kernarg_size 64
  .amdhsa_user_sgpr_count 2
  .amdhsa_user_sgpr_kernarg_segment_ptr 1
  .amdhsa_system_sgpr_workgroup_id_x 1
.end_amdhsa_kernel
""" % KN
    open(path, "w").write(out)
```
